```python
import torch

def _softmax(x, axis=-1):
    return torch.softmax(x, dim=axis)
def _gelu(x):
    return torch.nn.functional.gelu(x, approximate="tanh")
def _silu(x):
    return torch.nn.functional.silu(x)
def _sigmoid(x):
    return torch.sigmoid(x)
def _layernorm(x, axis=-1, eps=1e-5):
    m = x.mean(dim=axis, keepdim=True)
    v = x.var(dim=axis, keepdim=True, unbiased=False)
    return (x - m) / torch.sqrt(v + eps)
def _scatter_add(tgt, idx, src, axis=0):
    return tgt.clone().index_add_(axis, idx, src)
def _segment_sum(src, seg, n):
    out = torch.zeros((n,) + src.shape[1:], dtype=src.dtype)
    return out.index_add_(0, seg, src)
def _pad(x, pw):
    flat = tuple(v for pair in reversed(pw) for v in pair)
    return torch.nn.functional.pad(x, flat)

kernel_name = 'interleave_layers__linear_kernel_hedgehog__mixer_s_mlp__prompt'

def setup_inputs():

    _w = (lambda a: (lambda t: t.to(torch.bfloat16) if t.is_floating_point() else t)(torch.as_tensor(a)))
    def _A_setup():
        B, S, D, H = 1, 2048, 448, 16
        Dh = D // H
        return {
            "x": _w((lambda *s: torch.randn(*s, dtype=torch.bfloat16) * 0.05)(B, S, D)),
            "wqkv": _w((lambda *s: torch.randn(*s, dtype=torch.bfloat16) * 0.4)(D, 3 * D)),
            "w_phi": _w((lambda *s: torch.randn(*s, dtype=torch.bfloat16) * 0.4)(H, Dh, Dh) * (Dh ** -0.5)),
            "wo": _w((lambda *s: torch.randn(*s, dtype=torch.bfloat16) * 0.05)(D, D)),
        }
    _A_in = _A_setup()

    def _B_setup():
        B, S, D, F = 1, 2048, 448, 1792
        return {
            "x":  _w((lambda *s: torch.randn(*s, dtype=torch.bfloat16) * 0.05)(B, S, D)),
            "w1": _w((lambda *s: torch.randn(*s, dtype=torch.bfloat16) * 3.2)(D, D) * (D ** -0.5)),
            "w2": _w((lambda *s: torch.randn(*s, dtype=torch.bfloat16) * 3.2)(D, D) * (D ** -0.5)),
            "w3": _w((lambda *s: torch.randn(*s, dtype=torch.bfloat16) * 3.2)(D, F) * (D ** -0.5)),
            "w4": _w((lambda *s: torch.randn(*s, dtype=torch.bfloat16) * 3.2)(F, D) * (F ** -0.5)),
        }
    _B_in = _B_setup()

    return {
        "A_x": _A_in["x"],
        "A_wqkv": _A_in["wqkv"],
        "A_w_phi": _A_in["w_phi"],
        "A_wo": _A_in["wo"],
        "B_x": _B_in["x"],
        "B_w1": _B_in["w1"],
        "B_w2": _B_in["w2"],
        "B_w3": _B_in["w3"],
        "B_w4": _B_in["w4"],
    }

def reference(A_x, A_wqkv, A_w_phi, A_wo, B_x, B_w1, B_w2, B_w3, B_w4):
    def _A_ref(x, wqkv, w_phi, wo):
        B, S, D = x.shape
        H = 16; Dh = D // H
        qkv = (lambda x, *d: x.permute(*d))((x @ wqkv).reshape(B, S, 3, H, Dh), 2, 0, 3, 1, 4)
        q, k, v = qkv[0], qkv[1], qkv[2]
        pq = torch.einsum("bhsd,hdf->bhsf", q, w_phi)
        pk = torch.einsum("bhsd,hdf->bhsf", k, w_phi)
        phi_q = torch.concatenate([_softmax(pq, axis=-1), _softmax(-pq, axis=-1)], axis=-1)
        phi_k = torch.concatenate([_softmax(pk, axis=-1), _softmax(-pk, axis=-1)], axis=-1)
        kv = torch.einsum("bhsf,bhsd->bhfd", phi_k, v)
        z  = torch.einsum("bhsf->bhf", phi_k)
        num = torch.einsum("bhqf,bhfd->bhqd", phi_q, kv)
        den = torch.einsum("bhqf,bhf->bhq", phi_q, z)[..., None] + 1e-6
        o = num / den
        return (lambda x, *d: x.permute(*d))(o, 0, 2, 1, 3).reshape(B, S, D) @ wo

    def _B_ref(x, w1, w2, w3, w4):
        B, S, D = x.shape
        h = _gelu(_layernorm(x, axis=-1) @ w1)
        c = D // 4
        g0 = _pad(h[:, :, 0*c:1*c], ((0, 0), (1, 0), (0, 0)))[:, :S, :]
        g1 = _pad(h[:, :, 1*c:2*c], ((0, 0), (0, 1), (0, 0)))[:, 1:, :]
        g2 = _pad(h[:, :, 2*c:3*c], ((0, 0), (2, 0), (0, 0)))[:, :S, :]
        g3 = _pad(h[:, :, 3*c:   ], ((0, 0), (0, 2), (0, 0)))[:, 2:, :]
        hs = torch.concatenate([g0, g1, g2, g3], axis=-1) @ w2
        x1 = x + hs
        h2 = _gelu(_layernorm(x1, axis=-1) @ w3) @ w4
        return x1 + h2

    x = A_x
    x = x + _A_ref(_layernorm(x, axis=-1), A_wqkv, A_w_phi, A_wo)
    x = x + _B_ref(_layernorm(x, axis=-1), B_w1, B_w2, B_w3, B_w4)
    x = x + _A_ref(_layernorm(x, axis=-1), A_wqkv, A_w_phi, A_wo)
    x = x + _B_ref(_layernorm(x, axis=-1), B_w1, B_w2, B_w3, B_w4)
    return x
```

```python
import re

TRANS = ("v_exp_f32", "v_log_f32", "v_rcp_f32", "v_rsq_f32", "v_sqrt_f32", "v_sin_f32", "v_cos_f32")

def parse_regs(tok):
    tok = tok.strip()
    tok = tok.lstrip('-').strip()
    m = re.match(r"^abs\((.*)\)$", tok)
    if m: tok = m.group(1)
    m = re.match(r"^\|(.*)\|$", tok)
    if m: tok = m.group(1)
    m = re.match(r"^([vsa])\[(\d+):(\d+)\]$", tok)
    if m:
        return [(m.group(1), i) for i in range(int(m.group(2)), int(m.group(3)) + 1)]
    m = re.match(r"^([vsa])(\d+)$", tok)
    if m:
        return [(m.group(1), int(m.group(2)))]
    if tok == "vcc": return [('s', 'vcc')]
    if tok in ("vcc_lo", "vcc_hi"): return [('s', 'vcc')]
    if tok == "exec": return [('s', 'exec')]
    if tok == "m0": return [('s', 'm0')]
    return []

class Ins:
    __slots__ = ("text", "op", "dst", "src", "kind", "passes", "srcC", "isdpp")

def split_ops(s):
    out = []; depth = 0; cur = ""
    for ch in s:
        if ch in "[(": depth += 1
        if ch in "])": depth -= 1
        if ch == "," and depth == 0:
            out.append(cur.strip()); cur = ""
        else:
            cur += ch
    if cur.strip(): out.append(cur.strip())
    return out

def classify(text):
    t = text.split(";")[0].strip()
    I = Ins(); I.text = text; I.dst = []; I.src = []; I.kind = "other"; I.passes = 0; I.srcC = []; I.isdpp = False
    if not t or t.endswith(":") or t.startswith("."):
        I.op = ""; I.kind = "label" if t.endswith(":") else "dir"; return I
    parts = t.split(None, 1)
    op = parts[0]; I.op = op
    rest = parts[1] if len(parts) > 1 else ""
    ops = split_ops(rest)
    cleaned = []
    for k, o in enumerate(ops):
        w = o.split()
        cleaned.append(w[0] if w else "")
    R = [parse_regs(o) for o in cleaned]
    if op.startswith("v_mfma"):
        I.kind = "mfma"; I.dst = R[0]; I.src = R[1] + R[2]; I.srcC = R[3] if len(R) > 3 else []
        I.passes = 8 if "32x32" in op else 4
    elif op.startswith("v_cmp"):
        I.kind = "valu"; I.dst = R[0]; I.src = sum(R[1:], [])
        if op.startswith("v_cmpx"): I.dst = I.dst + [('s', 'exec')]
    elif op.startswith("v_permlane") and "swap" in op:
        I.kind = "valu"; I.dst = R[0] + R[1]; I.src = R[0] + R[1]; I.op = op
    elif op.startswith("v_"):
        I.kind = "valu"; I.dst = R[0]; I.src = sum(R[1:], [])
        if op.startswith(("v_fmac", "v_dot2c", "v_pk_fmac")): I.src = I.src + R[0]
        if op.startswith(("v_add_co", "v_addc_co", "v_sub_co", "v_subb_co")):
            I.dst = R[0] + R[1]; I.src = sum(R[2:], [])
        if "_dpp" in op or "row_" in rest or "quad_perm" in rest: I.isdpp = True; I.src = I.src + R[0]
        if op.startswith("v_cndmask") and len(R) == 3: I.src = I.src + [('s', 'vcc')]
        if op.startswith(("v_writelane",)): I.src = I.src + R[0]
    elif op.startswith(("buffer_load", "global_load")):
        I.kind = "vmem"
        if " lds" in (" " + rest):
            I.src = sum(R, []) + [('s', 'm0')]; I.kind = "vmem_lds"
        else:
            I.dst = R[0]; I.src = sum(R[1:], [])
            if "d16" in op: I.src = I.src + R[0]
    elif op.startswith(("buffer_store", "global_store", "buffer_atomic", "global_atomic")):
        I.kind = "vmem_st"; I.src = sum(R, [])
        if op.startswith("buffer_"): I.srcC = R[0]
        else: I.srcC = R[1]
        if "atomic" in op and (" sc0" in rest):
            I.dst = R[0]
    elif op.startswith("ds_"):
        I.kind = "ds"
        if op.startswith(("ds_read", "ds_bpermute", "ds_permute", "ds_swizzle")):
            I.dst = R[0]; I.src = sum(R[1:], [])
        else:
            I.src = sum(R, [])
    elif op.startswith("s_"):
        I.kind = "salu"
        if op.startswith(("s_cmp", "s_cbranch", "s_branch", "s_waitcnt", "s_nop", "s_barrier", "s_endpgm", "s_setprio", "s_sleep", "s_bitcmp")):
            I.src = sum(R, [])
            if op.startswith(("s_cbranch", "s_branch")): I.kind = "branch"
        else:
            I.dst = R[0] if R else []; I.src = sum(R[1:], [])
            if "saveexec" in op: I.dst = I.dst + [('s', 'exec')]
    return I

def states(I):
    if I.op == "s_nop":
        m = re.search(r"s_nop\s+(\d+)", I.text); return int(m.group(1)) + 1
    if I.kind in ("label", "dir"): return 0
    return 1

def need(P, C):
    n = 0
    pd = set(P.dst);
    cs = set(C.src); cd = set(C.dst); cc = set(C.srcC)
    pv = {r for r in pd if r[0] in 'va'}
    psg = {r for r in pd if r[0] == 's'}
    if P.kind == "valu":
        if C.kind == "mfma" and pv & (cs | cc): n = max(n, 2)
        if C.kind == "valu" and C.isdpp and pv & cs: n = max(n, 2)
        if C.kind == "valu" and C.op.startswith("v_permlane") and pv & cs: n = max(n, 2)
        if C.kind == "valu" and C.op.startswith(("v_readlane", "v_readfirstlane")) and pv & cs: n = max(n, 1)
        if P.op.startswith(TRANS) and C.kind == "valu" and pv & (cs | cd) and not C.op.startswith(TRANS): n = max(n, 1)
        if P.op.startswith(TRANS) and C.kind in ("vmem_st", "ds", "vmem", "vmem_lds", "mfma") and pv & (cs | cc): n = max(n, 2)
        if P.op.startswith("v_dot") and pv & (cs | cd | cc) and C.op != P.op: n = max(n, 3)
        if psg:
            if C.kind == "valu" and psg & cs: n = max(n, 4 if C.op.startswith(("v_readlane", "v_writelane")) else 2)
            if C.kind in ("vmem", "vmem_st", "vmem_lds") and psg & cs: n = max(n, 5)
            if C.kind == "salu" and psg & cs: n = max(n, 1)
            if C.kind == "branch" and "vcc" in C.op and ('s', 'vcc') in psg: n = max(n, 1)
            if ('s', 'exec') in psg:
                if C.kind == "mfma": n = max(n, 4)
                if C.kind == "valu" and C.isdpp: n = max(n, 5)
                if C.kind == "valu" and C.op.startswith(("v_readlane", "v_readfirstlane", "v_writelane", "v_permlane")): n = max(n, 4)
    if P.kind == "mfma":
        big = P.passes == 8
        if C.kind == "mfma":
            if pv & cs: n = max(n, 12 if big else 8)
            if pv & cc:
                if not (list(P.dst) == list(C.srcC) and P.passes == C.passes): n = max(n, 10 if big else 6)
        elif C.kind in ("valu", "vmem", "vmem_st", "vmem_lds", "ds"):
            if pv & (cs | cd | cc): n = max(n, 12 if big else 8)
        if C.kind == "valu" and set(P.srcC) & cd: n = max(n, 7 if big else 3)
    if P.kind == "salu" and ('s', 'm0') in pd and C.kind == "vmem_lds": n = max(n, 1)
    if P.kind == "vmem_st" and ("x4" in P.op or "x3" in P.op) and C.kind == "valu" and set(P.srcC) & cd: n = max(n, 2)
    if P.kind == "vmem_st" and ("x4" in P.op or "x3" in P.op) and C.kind in ("vmem", "ds") and set(P.srcC) & cd: n = max(n, 1)
    return n

MAXW = 12

def fix_hazards(lines):
    out = []
    hist = []
    for text in lines:
        I = classify(text)
        if I.kind in ("dir",):
            out.append(text); continue
        if I.kind == "label" or I.kind == "branch":
            worst = 0
            dist = 0
            for P in reversed(hist):
                w = 0
                if P.kind == "mfma": w = 12 if P.passes == 8 else 8
                elif P.kind == "valu":
                    w = 2
                    if any(r[0] == 's' for r in P.dst): w = 5
                    if P.op.startswith("v_dot"): w = max(w, 3)
                elif P.kind == "vmem_st": w = 2
                elif P.kind == "salu" and ('s', 'm0') in P.dst: w = 1
                worst = max(worst, w - dist)
                dist += states(P)
                if dist > MAXW: break
            if I.kind == "branch": worst = max(worst - 1, 0) if False else worst
            if worst > 0:
                while worst > 0:
                    k = min(worst, 16)
                    out.append(f"    s_nop {k-1}")
                    worst -= k
            hist = []
            out.append(text)
            continue
        req = 0
        dist = 0
        for P in reversed(hist):
            n = need(P, I)
            if n - dist > req: req = n - dist
            dist += states(P)
            if dist > MAXW: break
        if req > 0:
            nop = classify(f"    s_nop {req-1}")
            out.append(nop.text); hist.append(nop)
        out.append(text); hist.append(I)
        if len(hist) > 40: hist = hist[-30:]
    return out

class Asm:
    def __init__(self):
        self.lines = []
        self.uid = 0
    def __call__(self, s):
        for l in s.split("\n"):
            l = l.strip()
            if l: self.lines.append("    " + l)
    def label(self, l):
        self.lines.append(l + ":")
    def newlabel(self, base):
        self.uid += 1
        return f"L_{base}_{self.uid}"
    def raw(self, s):
        self.lines.append(s)
    def comment(self, s):
        self.lines.append("    ; " + s)

def vr(a, n=1):
    return f"v{a}" if n == 1 else f"v[{a}:{a+n-1}]"
def sr(a, n=1):
    return f"s{a}" if n == 1 else f"s[{a}:{a+n-1}]"
def magic(d):
    return (2**32 + d - 1) // d
```

```python
import sys
from asmlib import *

NAME = "interleave_layers__linear_kernel_hedgehog__mixer_s_mlp__prompt"
S, D, F, H, DH = 2048, 448, 1792, 16, 28
XBYTES = S * D * 2

off = 0
def region(n):
    global off
    o = off; off += (n + 255) // 256 * 256; return o
HEADW = 86 * 1024
WPQKV = region(16 * HEADW)
WPO = region(28 * 16 * 1024)
WP1 = region(28 * 14 * 1024)
WP2 = region(28 * 14 * 1024)
WP3 = region(112 * 14 * 1024)
WP4 = region(28 * 56 * 1024)
NFRAG = off // 1024
assert NFRAG == 5744
KVACC = [region(16 * 8192) for _ in range(2)]
assert KVACC[1] == KVACC[0] + 131072
PHIQ = [region(128 * 16 * 2048) for _ in range(2)]
XA = [region(XBYTES) for _ in range(2)]
XN = [region(XBYTES) for _ in range(2)]
HB = [region(XBYTES) for _ in range(2)]
X1 = [region(XBYTES) for _ in range(2)]
H2 = [region(S * F * 2) for _ in range(2)]
XB0 = region(XBYTES)
WS_USED = off

LOG2E = 1.4426950408889634
import struct
def f2u(x): return struct.unpack("<I", struct.pack("<f", x))[0]

KA = dict(A_x=0, wqkv=8, w_phi=16, wo=24, B_x=32, w1=40, w2=48, w3=56, w4=64, out=72, dbg=80, ws=88)

def srd(a, d, base, offset, size):
    if offset:
        a(f"s_add_u32 s{d}, s{base}, {offset}")
        a(f"s_addc_u32 s{d+1}, s{base+1}, 0")
    else:
        a(f"s_mov_b32 s{d}, s{base}")
        a(f"s_mov_b32 s{d+1}, s{base+1}")
    a(f"s_mov_b32 s{d+2}, {size}")
    a(f"s_mov_b32 s{d+3}, 0x00020000")

def srd_soff(a, d, base, offset, soff, size):
    a(f"s_add_u32 s{d}, s{base}, s{soff}")
    a(f"s_addc_u32 s{d+1}, s{base+1}, 0")
    if offset:
        a(f"s_add_u32 s{d}, s{d}, {offset}")
        a(f"s_addc_u32 s{d+1}, s{d+1}, 0")
    a(f"s_mov_b32 s{d+2}, {size}")
    a(f"s_mov_b32 s{d+3}, 0x00020000")

def common_prologue(a, nwg, done):
    a(f"s_cmp_ge_u32 s2, {nwg}")
    a(f"s_cbranch_scc1 {done}")
    a("v_and_b32 v1, 63, v0")
    a("v_lshrrev_b32 v2, 6, v0")
    a("v_readfirstlane_b32 s3, v2")
    a("v_lshlrev_b32 v2, 4, v1")
    a("v_and_b32 v3, 15, v1")
    a("v_lshrrev_b32 v4, 4, v1")
    a("v_add_u32 v5, 0x10000, v2")

def lds_frag(idx):
    if idx < 64: return ("v2", idx * 1024)
    assert idx < 128
    return ("v5", (idx - 64) * 1024)

def allred_groups(a, op, r, t):
    a(f"v_mov_b32 v{t}, v{r}")
    a(f"v_permlane32_swap_b32 v{r}, v{t}")
    a(f"{op} v{r}, v{r}, v{t}")
    a(f"v_mov_b32 v{t}, v{r}")
    a(f"v_permlane16_swap_b32 v{r}, v{t}")
    a(f"{op} v{r}, v{r}, v{t}")

def allred_row16(a, op, regs):
    for rot in (8, 4, 2, 1):
        for r in regs:
            a(f"{op}_dpp v{r}, v{r}, v{r} row_ror:{rot} row_mask:0xf bank_mask:0xf")

def bf16_round(a, r, t=None):
    a(f"v_cvt_pk_bf16_f32 v{r}, v{r}, v{r}")
    a(f"v_and_b32 v{r}, 0xffff0000, v{r}")

def ln_stats(a, xa, n, s1, s2, s1b, s2b, sones):
    a(f"v_mov_b32 v{s1}, 0"); a(f"v_mov_b32 v{s2}, 0"); a(f"v_mov_b32 v{s1b}, 0"); a(f"v_mov_b32 v{s2b}, 0")
    for i in range(n):
        d1, d2 = (s1, s2) if i % 2 == 0 else (s1b, s2b)
        a(f"v_dot2_f32_bf16 v{d1}, v{xa+i}, s{sones}, v{d1}")
        a(f"v_dot2_f32_bf16 v{d2}, v{xa+i}, v{xa+i}, v{d2}")
    a(f"v_add_f32 v{s1}, v{s1}, v{s1b}")
    a(f"v_add_f32 v{s2}, v{s2}, v{s2b}")
    allred_groups(a, "v_add_f32", s1, s1b)
    allred_groups(a, "v_add_f32", s2, s2b)

def ln_finish(a, xa, n, s1, s2, tp, ntp=4):
    R, M = tp, tp + 2
    a(f"v_mul_f32 v{s1}, {f2u(1.0/448):#x}, v{s1}")
    a(f"v_mul_f32 v{s2}, {f2u(1.0/448):#x}, v{s2}")
    a(f"v_fma_f32 v{s2}, -v{s1}, v{s1}, v{s2}")
    a(f"v_max_f32 v{s2}, 0, v{s2}")
    bf16_round(a, s1)
    bf16_round(a, s2)
    a(f"v_add_f32 v{s2}, {f2u(1e-5):#x}, v{s2}")
    bf16_round(a, s2)
    a(f"v_sqrt_f32 v{s2}, v{s2}")
    bf16_round(a, s2)
    a(f"v_rcp_f32 v{R}, v{s2}")
    a(f"v_mul_f32 v{M}, v{s1}, v{R}")
    a(f"v_sub_f32 v{M}, 0, v{M}")
    for i in range(n):
        t = tp + 4 + 2 * (i % ntp)
        a(f"v_lshlrev_b32 v{t}, 16, v{xa+i}")
        a(f"v_and_b32 v{t+1}, 0xffff0000, v{xa+i}")
        a(f"v_pk_fma_f32 v[{t}:{t+1}], v[{t}:{t+1}], v[{R}:{R+1}], v[{M}:{M+1}] op_sel_hi:[1,0,0]")
        a(f"v_cvt_pk_bf16_f32 v{xa+i}, v{t}, v{t+1}")

def gelu_pairs(a, regs, tmp):
    C1 = f2u(0.044715); C2 = f2u(-2.0 * 0.7978845608028654 * LOG2E)
    out = []
    n = len(regs)
    for i in range(0, n, 2):
        r0, r1 = regs[i], regs[i + 1]
        a(f"v_cvt_pk_bf16_f32 v{r1}, v{r0}, v{r1}")
        a(f"v_lshlrev_b32 v{r0}, 16, v{r1}")
        a(f"v_and_b32 v{r1}, 0xffff0000, v{r1}")
    for base in range(0, n, 4):
        grp = regs[base:base + 4]
        for k, r in enumerate(grp):
            a(f"v_mul_f32 v{tmp+k}, v{r}, v{r}")
        for k, r in enumerate(grp):
            a(f"v_fmaak_f32 v{tmp+k}, {C1:#x}, v{tmp+k}, 1.0" if False else f"v_fma_f32 v{tmp+k}, v{tmp+k}, s90, 1.0")
        for k, r in enumerate(grp):
            a(f"v_mul_f32 v{tmp+k}, v{tmp+k}, v{r}")
        for k, r in enumerate(grp):
            a(f"v_mul_f32 v{tmp+k}, s91, v{tmp+k}")
        for k, r in enumerate(grp):
            a(f"v_exp_f32 v{tmp+k}, v{tmp+k}")
        for k, r in enumerate(grp):
            a(f"v_add_f32 v{tmp+k}, 1.0, v{tmp+k}")
        for k, r in enumerate(grp):
            a(f"v_rcp_f32 v{tmp+k}, v{tmp+k}")
        for k, r in enumerate(grp):
            a(f"v_mul_f32 v{r}, v{r}, v{tmp+k}")
    return

def gelu_consts(a):
    a(f"s_mov_b32 s90, {f2u(0.044715):#x}")
    a(f"s_mov_b32 s91, {f2u(-2.0 * 0.7978845608028654 * LOG2E):#x}")

def dma_frags(a, srdW, first_s, count, lds_base, tmp_s, gbase_s=None):
    a(f"s_lshl_b32 s{tmp_s}, s{first_s}, 10")
    a(f"s_add_u32 s{tmp_s+1}, s{tmp_s}, {lds_base}")
    if gbase_s is not None:
        a(f"s_add_u32 s{tmp_s}, s{tmp_s}, s{gbase_s}")
    i = 0
    while i < count:
        a(f"s_mov_b32 m0, s{tmp_s+1}")
        for k in range(min(4, count - i)):
            a(f"buffer_load_dwordx4 v2, s[{srdW}:{srdW+3}], s{tmp_s} offen offset:{k*1024} lds")
        i += 4
        if i < count:
            a(f"s_add_u32 s{tmp_s}, s{tmp_s}, 4096")
            a(f"s_add_u32 s{tmp_s+1}, s{tmp_s+1}, 4096")

def k0_prep(a):
    done = a.newlabel("k0done")
    a("s_load_dwordx4 s[4:7], s[0:1], 8")
    a("s_load_dwordx2 s[36:37], s[0:1], 24")
    a("s_load_dwordx4 s[40:43], s[0:1], 40")
    a("s_load_dwordx4 s[44:47], s[0:1], 56")
    a("s_load_dwordx2 s[48:49], s[0:1], 88")
    common_prologue(a, 256, done)
    a("s_waitcnt lgkmcnt(0)")
    srd(a, 8, 48, KVACC[0], 262144)
    a("s_lshl_b32 s50, s2, 9")
    a("v_add_u32 v6, s50, v0")
    a("v_lshlrev_b32 v6, 2, v6")
    a("v_mov_b32 v7, 0")
    a("buffer_store_dword v7, v6, s[8:11], 0 offen")
    srd(a, 8, 48, 0, NFRAG * 1024)
    a("v_lshrrev_b32 v6, 2, v3")
    a("v_and_b32 v7, 3, v3")
    a("v_lshl_add_u32 v8, v6, 4, v7")
    a("v_mul_u32_u24 v9, 28, v6")
    a("v_add_u32 v9, v9, v7")
    a("v_cmp_le_u32 s[52:53], 12, v3")
    a("v_cmp_eq_u32 s[54:55], 3, v4")
    a("v_mov_b32 v15, 0x40000000")
    a("s_lshl_b32 s50, s2, 3")
    a("s_add_u32 s50, s50, s3")
    loop = a.newlabel("k0loop"); std = a.newlabel("k0std"); perm = a.newlabel("k0perm"); store = a.newlabel("k0store")
    t_o, t_1, t_2, t_3, t_4, t_phi = [a.newlabel("k0t") for _ in range(6)]
    colgen = a.newlabel("k0col")
    a.label(loop)
    a(f"s_cmp_ge_u32 s50, {NFRAG}")
    a(f"s_cbranch_scc1 {done}")
    b_o = 1376; b_1 = b_o + 448; b_2 = b_1 + 392; b_3 = b_2 + 392; b_4 = b_3 + 1568
    a(f"s_cmp_ge_u32 s50, {b_4}"); a(f"s_cbranch_scc1 {t_4}")
    a(f"s_cmp_ge_u32 s50, {b_3}"); a(f"s_cbranch_scc1 {t_3}")
    a(f"s_cmp_ge_u32 s50, {b_2}"); a(f"s_cbranch_scc1 {t_2}")
    a(f"s_cmp_ge_u32 s50, {b_1}"); a(f"s_cbranch_scc1 {t_1}")
    a(f"s_cmp_ge_u32 s50, {b_o}"); a(f"s_cbranch_scc1 {t_o}")
    a(f"s_mov_b32 s60, {magic(86)}")
    a("s_mul_hi_u32 s61, s50, s60")
    a("s_mul_i32 s62, s61, 86")
    a("s_sub_u32 s62, s50, s62")
    a("s_cmp_ge_u32 s62, 84"); a(f"s_cbranch_scc1 {t_phi}")
    a(f"s_mov_b32 s60, {magic(14)}")
    a("s_mul_hi_u32 s63, s62, s60")
    a("s_mul_i32 s64, s63, 14")
    a("s_sub_u32 s64, s62, s64")
    a("s_lshr_b32 s65, s63, 1")
    a("s_and_b32 s66, s63, 1")
    a("s_mul_i32 s65, s65, 448")
    a("s_mul_i32 s67, s61, 28")
    a("s_add_u32 s65, s65, s67")
    a("s_lshl_b32 s67, s66, 4")
    a("s_add_u32 s65, s65, s67")
    srd(a, 12, 4, 0, 448 * 1344 * 2)
    a("s_mov_b32 s70, 2688")
    a("s_mul_i32 s71, s64, 32*2688")
    a("v_add_u32 v10, s65, v3")
    a("v_lshlrev_b32 v10, 1, v10")
    a("v_mul_u32_u24 v11, 8*2688, v4")
    a("v_add_u32 v10, v10, v11")
    a("s_cmp_eq_u32 s66, 0"); a(f"s_cbranch_scc1 {std}")
    a("v_cndmask_b32 v10, v10, v15, s[52:53]")
    a(f"s_branch {std}")
    a.label(t_phi)
    a("s_sub_u32 s66, s62, 84")
    srd(a, 12, 6, 0, 16 * 784 * 2)
    a("s_mov_b32 s70, 56")
    a("s_mul_i32 s71, s61, 1568")
    a("s_lshl_b32 s67, s66, 4")
    a("v_add_u32 v10, s67, v3")
    a("v_lshlrev_b32 v10, 1, v10")
    a("v_mul_u32_u24 v11, 4*56, v4")
    a("v_add_u32 v10, v10, v11")
    a("s_cmp_eq_u32 s66, 0"); a(f"s_cbranch_scc1 {perm}")
    a("v_cndmask_b32 v10, v10, v15, s[52:53]")
    a(f"s_branch {perm}")
    a.label(t_o)
    a(f"s_sub_u32 s62, s50, {b_o}")
    a("s_lshr_b32 s63, s62, 4")
    a("s_and_b32 s64, s62, 15")
    srd(a, 12, 36, 0, 448 * 448 * 2)
    a("s_mov_b32 s70, 896")
    a("s_mul_i32 s71, s64, 28*896")
    a("s_lshr_b32 s65, s63, 2"); a("s_lshl_b32 s65, s65, 6")
    a("s_and_b32 s66, s63, 3"); a("s_lshl_b32 s66, s66, 2")
    a("s_add_u32 s65, s65, s66")
    a("v_add_u32 v10, s65, v8")
    a("v_lshlrev_b32 v10, 1, v10")
    a("v_mul_u32_u24 v11, 4*896, v4")
    a("v_add_u32 v10, v10, v11")
    a(f"s_branch {perm}")
    for lab, b, ptr in ((t_1, b_1, 40), (t_2, b_2, 42)):
        a.label(lab)
        a(f"s_sub_u32 s62, s50, {b}")
        a(f"s_mov_b32 s60, {magic(14)}")
        a("s_mul_hi_u32 s63, s62, s60")
        a("s_mul_i32 s64, s63, 14")
        a("s_sub_u32 s64, s62, s64")
        srd(a, 12, ptr, 0, 448 * 448 * 2)
        a(f"s_branch {colgen}")
    a.label(t_4)
    a(f"s_sub_u32 s62, s50, {b_4}")
    a(f"s_mov_b32 s60, {magic(56)}")
    a("s_mul_hi_u32 s63, s62, s60")
    a("s_mul_i32 s64, s63, 56")
    a("s_sub_u32 s64, s62, s64")
    srd(a, 12, 46, 0, 1792 * 448 * 2)
    a.label(colgen)
    a("s_mov_b32 s70, 896")
    a("s_mul_i32 s71, s64, 32*896")
    a("s_lshr_b32 s65, s63, 2"); a("s_lshl_b32 s65, s65, 6")
    a("s_and_b32 s66, s63, 3"); a("s_lshl_b32 s66, s66, 2")
    a("s_add_u32 s65, s65, s66")
    a("v_add_u32 v10, s65, v8")
    a("v_lshlrev_b32 v10, 1, v10")
    a("v_mul_u32_u24 v11, 8*896, v4")
    a("v_add_u32 v10, v10, v11")
    a(f"s_branch {std}")
    a.label(t_3)
    a(f"s_sub_u32 s62, s50, {b_3}")
    a(f"s_mov_b32 s60, {magic(14)}")
    a("s_mul_hi_u32 s63, s62, s60")
    a("s_mul_i32 s64, s63, 14")
    a("s_sub_u32 s64, s62, s64")
    a(f"s_mov_b32 s60, {magic(7)}")
    a("s_mul_hi_u32 s65, s63, s60")
    a("s_mul_i32 s66, s65, 7")
    a("s_sub_u32 s66, s63, s66")
    srd(a, 12, 44, 0, 448 * 1792 * 2)
    a("s_mov_b32 s70, 3584")
    a("s_mul_i32 s71, s64, 32*3584")
    a("s_mul_i32 s65, s65, 112")
    a("s_lshl_b32 s66, s66, 2")
    a("s_add_u32 s65, s65, s66")
    a("v_add_u32 v10, s65, v9")
    a("v_lshlrev_b32 v10, 1, v10")
    a("v_mul_u32_u24 v11, 8*3584, v4")
    a("v_add_u32 v10, v10, v11")
    a.label(std)
    for j in range(8):
        a(f"buffer_load_ushort v{20 + j}, v10, s[12:15], s71 offen")
        if j < 7: a("s_add_u32 s71, s71, s70")
    a(f"s_branch {store}")
    a.label(perm)
    a("v_cndmask_b32 v11, v10, v15, s[54:55]")
    a("s_mul_i32 s72, s70, 13")
    for j in range(8):
        vv = 10 if j < 4 else 11
        a(f"buffer_load_ushort v{20 + j}, v{vv}, s[12:15], s71 offen")
        if j == 3: a("s_add_u32 s71, s71, s72")
        elif j < 7: a("s_add_u32 s71, s71, s70")
    a.label(store)
    a("s_lshl_b32 s71, s50, 10")
    a("s_waitcnt vmcnt(0)")
    for i in range(4):
        a(f"v_lshl_or_b32 v{16+i}, v{21+2*i}, 16, v{20+2*i}")
    a("buffer_store_dwordx4 v[16:19], v2, s[8:11], s71 offen")
    a("s_add_u32 s50, s50, 2048")
    a(f"s_branch {loop}")
    a.label(done)
    a("s_endpgm")

def k1_qkv(a, layer):
    done = a.newlabel("k1done")
    a("s_load_dwordx2 s[4:5], s[0:1], 0")
    a("s_load_dwordx2 s[6:7], s[0:1], 88")
    common_prologue(a, 256, done)
    a("s_waitcnt lgkmcnt(0)")
    a("s_lshr_b32 s40, s2, 4")
    a("s_and_b32 s41, s2, 15")
    if layer == 0: srd(a, 8, 4, 0, XBYTES)
    else: srd(a, 8, 6, XB0, XBYTES)
    a(f"s_mul_i32 s42, s41, {HEADW}")
    srd_soff(a, 12, 6, WPQKV, 42, HEADW)
    a("s_mul_i32 s43, s3, 11")
    skip = a.newlabel("k1skip")
    dma_frags(a, 12, 43, 9, 0, 44)
    a("s_cmp_eq_u32 s3, 7"); a(f"s_cbranch_scc1 {skip}")
    a("s_add_u32 s43, s43, 9")
    dma_frags(a, 12, 43, 2, 0, 44)
    a.label(skip)
    XAr = 16
    a("s_lshl_b32 s44, s40, 7"); a("s_lshl_b32 s45, s3, 4"); a("s_add_u32 s44, s44, s45")
    a("v_add_u32 v6, s44, v3")
    a("v_mul_u32_u24 v6, 896, v6")
    a("v_lshl_add_u32 v6, v4, 4, v6")
    for ks in range(14):
        a(f"buffer_load_dwordx4 v[{XAr+4*ks}:{XAr+4*ks+3}], v6, s[8:11], 0 offen offset:{ks*64}")
    a("s_mov_b32 s46, 0x3f803f80")
    a("v_cmp_eq_u32 s[52:53], 3, v4")
    a("v_cmp_le_u32 s[54:55], 12, v3")
    a("v_cmp_eq_u32 s[56:57], 12, v3")
    a("s_waitcnt vmcnt(0)")
    ln_stats(a, XAr, 56, 8, 9, 10, 11, 46)
    ln_finish(a, XAr, 56, 8, 9, 72)
    a("s_barrier")
    WB = [80, 104]; ACC = 128
    def rd(ks, s):
        for mt in range(6):
            ad, o = lds_frag(mt * 14 + ks)
            a(f"ds_read_b128 v[{WB[s]+4*mt}:{WB[s]+4*mt+3}], {ad} offset:{o}")
    rd(0, 0)
    for ks in range(14):
        s = ks & 1
        if ks < 13:
            rd(ks + 1, 1 - s)
            a("s_waitcnt lgkmcnt(6)")
        else:
            a("s_waitcnt lgkmcnt(0)")
        xf = f"v[{XAr+4*ks}:{XAr+4*ks+3}]"
        for mt in range(6):
            wf = f"v[{WB[s]+4*mt}:{WB[s]+4*mt+3}]"
            acc = f"v[{ACC+4*mt}:{ACC+4*mt+3}]"
            c = "0" if ks == 0 else acc
            if mt < 4: a(f"v_mfma_f32_16x16x32_bf16 {acc}, {wf}, {xf}, {c}")
            else: a(f"v_mfma_f32_16x16x32_bf16 {acc}, {xf}, {wf}, {c}")
    PH = 80
    for u in range(2):
        ad, o = lds_frag(84 + u)
        a(f"ds_read_b128 v[{PH+4*u}:{PH+4*u+3}], {ad} offset:{o}")
    QF, KF = 88, 92
    for i in range(4):
        a(f"v_cvt_pk_bf16_f32 v{QF+i}, v{ACC+2*i}, v{ACC+2*i+1}")
        a(f"v_cvt_pk_bf16_f32 v{KF+i}, v{ACC+8+2*i}, v{ACC+8+2*i+1}")
    a("s_waitcnt lgkmcnt(0)")
    PQ, PK = 96, 104
    for u in range(2):
        a(f"v_mfma_f32_16x16x32_bf16 v[{PQ+4*u}:{PQ+4*u+3}], v[{PH+4*u}:{PH+4*u+3}], v[{QF}:{QF+3}], 0")
    for u in range(2):
        a(f"v_mfma_f32_16x16x32_bf16 v[{PK+4*u}:{PK+4*u+3}], v[{KF}:{KF+3}], v[{PH+4*u}:{PH+4*u+3}], 0")
    VV = ACC + 16
    for r in range(4):
        a(f"v_cndmask_b32 v{VV+4+r}, v{VV+4+r}, 1.0, s[56:57]")
    VB = 112
    for t in range(2):
        a(f"v_cvt_pk_bf16_f32 v{VB+2*t}, v{VV+4*t}, v{VV+4*t+1}")
        a(f"v_cvt_pk_bf16_f32 v{VB+2*t+1}, v{VV+4*t+2}, v{VV+4*t+3}")
    for base in (PQ, PK):
        for i in range(0, 8, 2):
            a(f"v_cvt_pk_bf16_f32 v{base+i+1}, v{base+i}, v{base+i+1}")
            a(f"v_lshlrev_b32 v{base+i}, 16, v{base+i+1}")
            a(f"v_and_b32 v{base+i+1}, 0xffff0000, v{base+i+1}")
    a(f"s_mov_b32 s47, {f2u(LOG2E):#x}")
    MX, MN, T0, T1 = 8, 9, 10, 11
    a(f"v_max3_f32 v{MX}, v{PQ}, v{PQ+1}, v{PQ+2}"); a(f"v_max_f32 v{MX}, v{MX}, v{PQ+3}")
    a(f"v_min3_f32 v{MN}, v{PQ}, v{PQ+1}, v{PQ+2}"); a(f"v_min_f32 v{MN}, v{MN}, v{PQ+3}")
    a(f"v_max3_f32 v{T0}, v{PQ+4}, v{PQ+5}, v{PQ+6}"); a(f"v_max3_f32 v{T0}, v{T0}, v{PQ+7}, v{MX}")
    a(f"v_min3_f32 v{T1}, v{PQ+4}, v{PQ+5}, v{PQ+6}"); a(f"v_min3_f32 v{T1}, v{T1}, v{PQ+7}, v{MN}")
    a(f"v_cndmask_b32 v{MX}, v{T0}, v{MX}, s[52:53]")
    a(f"v_cndmask_b32 v{MN}, v{T1}, v{MN}, s[52:53]")
    allred_groups(a, "v_max_f32", MX, T0)
    allred_groups(a, "v_min_f32", MN, T1)
    a(f"v_mul_f32 v{MX}, s47, v{MX}")
    a(f"v_mul_f32 v{MN}, s47, v{MN}")
    EP, EM = 16, 24
    for i in range(8):
        a(f"v_fma_f32 v{EP+i}, v{PQ+i}, s47, -v{MX}")
        a(f"v_fma_f32 v{EM+i}, -v{PQ+i}, s47, v{MN}")
    for i in range(8):
        a(f"v_exp_f32 v{EP+i}, v{EP+i}")
        a(f"v_exp_f32 v{EM+i}, v{EM+i}")
    for i in range(4, 8):
        a(f"v_cndmask_b32 v{EP+i}, v{EP+i}, 0, s[52:53]")
        a(f"v_cndmask_b32 v{EM+i}, v{EM+i}, 0, s[52:53]")
    for E, Sg in ((EP, MX), (EM, MN)):
        a(f"v_add_f32 v{Sg}, v{E}, v{E+1}")
        for i in range(2, 8): a(f"v_add_f32 v{Sg}, v{Sg}, v{E+i}")
    allred_groups(a, "v_add_f32", MX, T0)
    allred_groups(a, "v_add_f32", MN, T1)
    a(f"v_rcp_f32 v{MX}, v{MX}"); a(f"v_rcp_f32 v{MN}, v{MN}")
    for i in range(8):
        a(f"v_mul_f32 v{EP+i}, v{EP+i}, v{MX}")
        a(f"v_mul_f32 v{EM+i}, v{EM+i}, v{MN}")
    OQ = 32
    for i in range(4):
        a(f"v_cvt_pk_bf16_f32 v{OQ+i}, v{EP+2*i}, v{EP+2*i+1}")
        a(f"v_cvt_pk_bf16_f32 v{OQ+4+i}, v{EM+2*i}, v{EM+2*i+1}")
    srd(a, 16, 6, PHIQ[layer], 128 * 16 * 2048)
    a("s_lshl_b32 s44, s40, 3"); a("s_add_u32 s44, s44, s3")
    a("s_lshl_b32 s44, s44, 4"); a("s_add_u32 s44, s44, s41"); a("s_lshl_b32 s44, s44, 11")
    a(f"buffer_store_dwordx4 v[{OQ}:{OQ+3}], v2, s[16:19], s44 offen")
    a(f"buffer_store_dwordx4 v[{OQ+4}:{OQ+7}], v2, s[16:19], s44 offen offset:1024")
    KX, KN = 40, 44
    for r in range(4):
        a(f"v_max_f32 v{KX+r}, v{PK+r}, v{PK+4+r}")
        a(f"v_min_f32 v{KN+r}, v{PK+r}, v{PK+4+r}")
    for r in range(4):
        a(f"v_cndmask_b32 v{KX+r}, v{KX+r}, v{PK+r}, s[54:55]")
        a(f"v_cndmask_b32 v{KN+r}, v{KN+r}, v{PK+r}, s[54:55]")
    for rot in (8, 4, 2, 1):
        for r in range(4):
            a(f"v_max_f32_dpp v{KX+r}, v{KX+r}, v{KX+r} row_ror:{rot} row_mask:0xf bank_mask:0xf")
            a(f"v_min_f32_dpp v{KN+r}, v{KN+r}, v{KN+r} row_ror:{rot} row_mask:0xf bank_mask:0xf")
    for r in range(4):
        a(f"v_mul_f32 v{KX+r}, s47, v{KX+r}")
        a(f"v_mul_f32 v{KN+r}, s47, v{KN+r}")
    KP, KM = 48, 56
    for i in range(8):
        a(f"v_fma_f32 v{KP+i}, v{PK+i}, s47, -v{KX+(i&3)}")
        a(f"v_fma_f32 v{KM+i}, -v{PK+i}, s47, v{KN+(i&3)}")
    for i in range(8):
        a(f"v_exp_f32 v{KP+i}, v{KP+i}")
        a(f"v_exp_f32 v{KM+i}, v{KM+i}")
    for i in range(4, 8):
        a(f"v_cndmask_b32 v{KP+i}, v{KP+i}, 0, s[54:55]")
        a(f"v_cndmask_b32 v{KM+i}, v{KM+i}, 0, s[54:55]")
    for r in range(4):
        a(f"v_add_f32 v{KX+r}, v{KP+r}, v{KP+4+r}")
        a(f"v_add_f32 v{KN+r}, v{KM+r}, v{KM+4+r}")
    allred_row16(a, "v_add_f32", [KX + r for r in range(4)] + [KN + r for r in range(4)])
    for r in range(4):
        a(f"v_rcp_f32 v{KX+r}, v{KX+r}"); a(f"v_rcp_f32 v{KN+r}, v{KN+r}")
    for i in range(8):
        a(f"v_mul_f32 v{KP+i}, v{KP+i}, v{KX+(i&3)}")
        a(f"v_mul_f32 v{KM+i}, v{KM+i}, v{KN+(i&3)}")
    KA_ = 64
    for part, E in enumerate((KP, KM)):
        for u in range(2):
            d = KA_ + (part * 2 + u) * 2
            a(f"v_cvt_pk_bf16_f32 v{d}, v{E+4*u}, v{E+4*u+1}")
            a(f"v_cvt_pk_bf16_f32 v{d+1}, v{E+4*u+2}, v{E+4*u+3}")
    KV = 128
    for part in range(2):
        for t in range(2):
            for u in range(2):
                d = KV + (part * 2 + t) * 8 + u * 4
                af = KA_ + (part * 2 + u) * 2
                a(f"v_mfma_f32_16x16x16_bf16 v[{d}:{d+3}], v[{af}:{af+1}], v[{VB+2*t}:{VB+2*t+1}], 0")
    a("s_barrier")
    a("v_lshlrev_b32 v6, 2, v1")
    a("s_lshl_b32 s44, s3, 13")
    a("v_add_u32 v7, s44, v6")
    for i in range(32):
        a(f"ds_write_b32 v7, v{KV+i} offset:{i*256}")
    a("s_waitcnt lgkmcnt(0)")
    a("s_barrier")
    a("s_lshl_b32 s44, s3, 10")
    a("v_add_u32 v7, s44, v6")
    RR = 16
    for i in range(4):
        for ww in range(8):
            a(f"ds_read_b32 v{RR+i*8+ww}, v7 offset:{ww*8192+i*256}")
    a("s_waitcnt lgkmcnt(0)")
    for i in range(4):
        b = RR + i * 8
        a(f"v_add_f32 v{b}, v{b}, v{b+1}"); a(f"v_add_f32 v{b+2}, v{b+2}, v{b+3}")
        a(f"v_add_f32 v{b+4}, v{b+4}, v{b+5}"); a(f"v_add_f32 v{b+6}, v{b+6}, v{b+7}")
        a(f"v_add_f32 v{b}, v{b}, v{b+2}"); a(f"v_add_f32 v{b+4}, v{b+4}, v{b+6}")
        a(f"v_add_f32 v{b}, v{b}, v{b+4}")
    srd(a, 20, 6, KVACC[layer], 131072)
    a("s_lshl_b32 s44, s41, 13"); a("s_lshl_b32 s45, s3, 10"); a("s_add_u32 s44, s44, s45")
    for i in range(4):
        a(f"buffer_atomic_add_f32 v{RR+i*8}, v6, s[20:23], s44 offen offset:{i*256}")
    a.label(done)
    a("s_endpgm")

def rbcb(a):
    a(f"s_mov_b32 s44, {magic(7)}")
    a("s_mul_hi_u32 s40, s2, s44")
    a("s_mul_i32 s41, s40, 7")
    a("s_sub_u32 s41, s2, s41")
    a("s_and_b32 s42, s3, 3")
    a("s_lshr_b32 s43, s3, 2")

def half_exchange(a, ACC, RED, T):
    lo = a.newlabel("hx_lo"); j1 = a.newlabel("hx_j1")
    a("s_lshl_b32 s44, s42, 1"); a("s_add_u32 s44, s44, s43"); a("s_lshl_b32 s45, s44, 11")
    a("s_xor_b32 s44, s44, 1"); a("s_lshl_b32 s44, s44, 11")
    a(f"s_add_u32 s45, s45, {RED}"); a(f"s_add_u32 s44, s44, {RED}")
    a(f"v_add_u32 v6, s45, v2")
    a(f"v_add_u32 v7, s44, v2")
    RED = 0
    a("s_cmp_eq_u32 s43, 0"); a(f"s_cbranch_scc1 {lo}")
    a(f"ds_write_b128 v6, v[{ACC}:{ACC+3}] offset:{RED}")
    a(f"ds_write_b128 v6, v[{ACC+4}:{ACC+7}] offset:{RED+1024}")
    for i in range(8): a(f"v_mov_b32 v{T+i}, v{ACC+8+i}")
    a(f"s_branch {j1}")
    a.label(lo)
    a(f"ds_write_b128 v6, v[{ACC+8}:{ACC+11}] offset:{RED}")
    a(f"ds_write_b128 v6, v[{ACC+12}:{ACC+15}] offset:{RED+1024}")
    for i in range(8): a(f"v_mov_b32 v{T+i}, v{ACC+i}")
    a.label(j1)
    a("s_waitcnt lgkmcnt(0)")
    a("s_barrier")
    a(f"ds_read_b128 v[{ACC}:{ACC+3}], v7 offset:{RED}")
    a(f"ds_read_b128 v[{ACC+4}:{ACC+7}], v7 offset:{RED+1024}")
    a("s_waitcnt lgkmcnt(0)")
    for i in range(8): a(f"v_add_f32 v{T+i}, v{T+i}, v{ACC+i}")

def tile_voff(a, v):
    a("s_lshl_b32 s44, s40, 6"); a("s_lshl_b32 s45, s42, 4"); a("s_add_u32 s44, s44, s45")
    a(f"v_add_u32 v{v}, s44, v3")
    a(f"v_mul_u32_u24 v{v}, 896, v{v}")
    a(f"v_lshl_add_u32 v{v}, v4, 5, v{v}")
    a("s_lshl_b32 s44, s41, 7"); a("s_lshl_b32 s45, s43, 4"); a("s_add_u32 s44, s44, s45")
    a(f"v_add_u32 v{v}, s44, v{v}")

def unpack_add(a, T, src, dst_round=True):
    for i in range(4):
        a(f"v_lshlrev_b32 v8, 16, v{src+i}")
        a(f"v_and_b32 v9, 0xffff0000, v{src+i}")
        a(f"v_add_f32 v{T+2*i}, v{T+2*i}, v8")
        a(f"v_add_f32 v{T+2*i+1}, v{T+2*i+1}, v9")

def round8(a, T):
    for i in range(0, 8, 2):
        a(f"v_cvt_pk_bf16_f32 v{T+i+1}, v{T+i}, v{T+i+1}")
        a(f"v_lshlrev_b32 v{T+i}, 16, v{T+i+1}")
        a(f"v_and_b32 v{T+i+1}, 0xffff0000, v{T+i+1}")

def pack8(a, T, O):
    for i in range(4):
        a(f"v_cvt_pk_bf16_f32 v{O+i}, v{T+2*i}, v{T+2*i+1}")

def k2_attn_out(a, layer):
    done = a.newlabel("k2done")
    a("s_load_dwordx2 s[4:5], s[0:1], 0")
    a("s_load_dwordx2 s[6:7], s[0:1], 88")
    common_prologue(a, 224, done)
    a("s_waitcnt lgkmcnt(0)")
    rbcb(a)
    L_WO, L_KV, L_Z, L_RED = 0, 65536, 131072, 133120
    if layer == 0: srd(a, 8, 4, 0, XBYTES)
    else: srd(a, 8, 6, XB0, XBYTES)
    a("s_lshl_b32 s44, s41, 16")
    srd_soff(a, 12, 6, WPO, 44, 65536)
    srd(a, 16, 6, PHIQ[layer], 128 * 16 * 2048)
    srd(a, 20, 6, KVACC[layer], 131072)
    srd(a, 24, 6, XA[layer], XBYTES)
    a("s_lshl_b32 s46, s3, 3")
    dma_frags(a, 12, 46, 8, L_WO, 44)
    KL = 16
    a("v_lshlrev_b32 v6, 2, v1")
    a("s_lshl_b32 s44, s3, 14")
    for fi in range(8):
        for j in range(8):
            o = fi * 2048 + j * 256
            if o >= 4096 and o % 4096 == 0:
                a("s_add_u32 s44, s44, 4096")
            a(f"buffer_load_dword v{KL+fi*8+j}, v6, s[20:23], s44 offen offset:{o % 4096}")
    PQ = 96
    a("s_lshl_b32 s44, s40, 2"); a("s_add_u32 s44, s44, s42"); a("s_lshl_b32 s44, s44, 4")
    a("s_lshl_b32 s45, s43, 3"); a("s_add_u32 s44, s44, s45"); a("s_lshl_b32 s44, s44, 11")
    for i in range(16):
        o = i * 1024
        if o >= 4096 and o % 4096 == 0: a("s_add_u32 s44, s44, 4096")
        a(f"buffer_load_dwordx4 v[{PQ+4*i}:{PQ+4*i+3}], v2, s[16:19], s44 offen offset:{o%4096}")
    XT = 160
    tile_voff(a, 12)
    a(f"buffer_load_dwordx4 v[{XT}:{XT+3}], v12, s[8:11], 0 offen")
    a("v_cmp_eq_u32 s[52:53], 3, v4")
    a("v_cmp_eq_u32 s[56:57], 12, v3")
    a("s_waitcnt vmcnt(17)")
    KC = 80
    a("s_lshl_b32 s44, s3, 13")
    a(f"v_add_u32 v7, s44, v2")
    a(f"v_add_u32 v7, {L_KV}, v7")
    a("s_lshl_b32 s44, s3, 8")
    a("v_lshl_add_u32 v13, v4, 4, s44")
    a(f"v_add_u32 v13, {L_Z}, v13")
    for fi in range(8):
        for i in range(4):
            a(f"v_cvt_pk_bf16_f32 v{KC+(fi&1)*4+i}, v{KL+fi*8+2*i}, v{KL+fi*8+2*i+1}")
        a(f"ds_write_b128 v7, v[{KC+(fi&1)*4}:{KC+(fi&1)*4+3}] offset:{fi*1024}")
        if fi & 1:
            a("s_mov_b64 exec, s[56:57]")
            a(f"ds_write_b128 v13, v[{KC+4}:{KC+7}] offset:{(fi>>1)*64}")
            a("s_mov_b64 exec, -1")
    a("s_waitcnt vmcnt(0) lgkmcnt(0)")
    a("s_barrier")
    ACC = 64
    KF = 16
    NUM = 56
    DEN = 88; OF = 92
    a("s_lshl_b32 s44, s43, 15")
    a(f"v_add_u32 v8, s44, v2"); a(f"v_add_u32 v8, {L_KV}, v8")
    a("s_lshl_b32 s44, s43, 13")
    a(f"v_add_u32 v9, s44, v2")
    a("s_lshl_b32 s44, s43, 10")
    a("v_lshl_add_u32 v10, v4, 4, s44"); a(f"v_add_u32 v10, {L_Z}, v10")
    for i in range(8):
        for p in range(4):
            a(f"ds_read_b128 v[{KF+4*p}:{KF+4*p+3}], v8 offset:{i*4096+p*1024}")
        for p in range(2):
            a(f"ds_read_b128 v[{KF+16+4*p}:{KF+16+4*p+3}], v10 offset:{i*128+p*64}")
        for nt in range(4):
            a(f"ds_read_b128 v[{KF+24+4*nt}:{KF+24+4*nt+3}], v9 offset:{nt*16384+i*1024}")
        a("s_waitcnt lgkmcnt(4)")
        for part in range(2):
            pf = f"v[{PQ+(2*i+part)*4}:{PQ+(2*i+part)*4+3}]"
            for t in range(2):
                kf = KF + (part * 2 + t) * 4
                c = "0" if part == 0 else f"v[{NUM+4*t}:{NUM+4*t+3}]"
                a(f"v_mfma_f32_16x16x32_bf16 v[{NUM+4*t}:{NUM+4*t+3}], v[{kf}:{kf+3}], {pf}, {c}")
            c = "0" if part == 0 else f"v[{DEN}:{DEN+3}]"
            a(f"v_mfma_f32_16x16x32_bf16 v[{DEN}:{DEN+3}], v[{KF+16+4*part}:{KF+16+4*part+3}], {pf}, {c}")
        bf16_round(a, DEN)
        a(f"v_add_f32 v{DEN}, {f2u(1e-6):#x}, v{DEN}")
        bf16_round(a, DEN)
        a(f"v_rcp_f32 v{DEN}, v{DEN}")
        round8(a, NUM)
        for k in range(8): a(f"v_mul_f32 v{NUM+k}, v{NUM+k}, v{DEN}")
        pack8(a, NUM, OF)
        a(f"v_cndmask_b32 v{OF+2}, v{OF+2}, 0, s[52:53]")
        a(f"v_cndmask_b32 v{OF+3}, v{OF+3}, 0, s[52:53]")
        a("s_waitcnt lgkmcnt(0)")
        for nt in range(4):
            c = "0" if i == 0 else f"v[{ACC+4*nt}:{ACC+4*nt+3}]"
            a(f"v_mfma_f32_16x16x32_bf16 v[{ACC+4*nt}:{ACC+4*nt+3}], v[{KF+24+4*nt}:{KF+24+4*nt+3}], v[{OF}:{OF+3}], {c}")
    T = 16
    half_exchange(a, ACC, L_RED, T)
    round8(a, T)
    unpack_add(a, T, XT)
    pack8(a, T, 24)
    a("buffer_store_dwordx4 v[24:27], v12, s[24:27], 0 offen")
    a.label(done)
    a("s_endpgm")

def stat_exchange(a, s1, s2, ST, idx):
    assert s2 == s1 + 1 and s1 % 2 == 0
    a("s_lshl_b32 s44, s43, 2"); a("s_add_u32 s44, s44, s42"); a("s_lshl_b32 s45, s44, 7")
    a("s_xor_b32 s44, s44, 4"); a("s_lshl_b32 s44, s44, 7")
    a("v_lshl_add_u32 v6, v3, 3, s45")
    a("v_lshl_add_u32 v7, v3, 3, s44")
    a(f"ds_write_b64 v6, v[{s1}:{s2}] offset:{ST+idx*1024}")
    a("s_waitcnt lgkmcnt(0)")
    a("s_barrier")
    a(f"ds_read_b64 v[6:7], v7 offset:{ST+idx*1024}")
    a("s_waitcnt lgkmcnt(0)")
    a(f"v_add_f32 v{s1}, v{s1}, v6")
    a(f"v_add_f32 v{s2}, v{s2}, v7")

def splitk_gemm7(a, XAr, ACC, WB, lds_w):
    a("s_mul_i32 s44, s43, 7168")
    a(f"v_add_u32 v8, s44, v2")
    def rd(k, s):
        for nt in range(4):
            a(f"ds_read_b128 v[{WB[s]+4*nt}:{WB[s]+4*nt+3}], v8 offset:{lds_w+(nt*14+k)*1024}")
    rd(0, 0)
    for k in range(7):
        s = k & 1
        if k < 6:
            rd(k + 1, 1 - s); a("s_waitcnt lgkmcnt(4)")
        else:
            a("s_waitcnt lgkmcnt(0)")
        for nt in range(4):
            c = "0" if k == 0 else f"v[{ACC+4*nt}:{ACC+4*nt+3}]"
            a(f"v_mfma_f32_16x16x32_bf16 v[{ACC+4*nt}:{ACC+4*nt+3}], v[{WB[s]+4*nt}:{WB[s]+4*nt+3}], v[{XAr+4*k}:{XAr+4*k+3}], {c}")

def k3_w1(a, layer):
    done = a.newlabel("k3done")
    a("s_load_dwordx2 s[6:7], s[0:1], 88")
    common_prologue(a, 224, done)
    a("s_waitcnt lgkmcnt(0)")
    rbcb(a)
    L_W, L_ST, L_RED = 0, 57344, 59392
    srd(a, 8, 6, XA[layer], XBYTES)
    a("s_mul_i32 s44, s41, 57344")
    srd_soff(a, 12, 6, WP1, 44, 57344)
    srd(a, 16, 6, XN[layer], XBYTES)
    srd(a, 20, 6, HB[layer], XBYTES)
    a("s_mul_i32 s46, s3, 7")
    dma_frags(a, 12, 46, 7, L_W, 44)
    XAr = 16
    a("s_lshl_b32 s44, s40, 6"); a("s_lshl_b32 s45, s42, 4"); a("s_add_u32 s44, s44, s45")
    a("v_add_u32 v12, s44, v3")
    a("v_mul_u32_u24 v12, 896, v12")
    a("v_lshl_add_u32 v12, v4, 4, v12")
    a("s_mul_i32 s44, s43, 448")
    a("v_add_u32 v12, s44, v12")
    for k in range(7):
        a(f"buffer_load_dwordx4 v[{XAr+4*k}:{XAr+4*k+3}], v12, s[8:11], 0 offen offset:{k*64}")
    a("s_mov_b32 s46, 0x3f803f80")
    gelu_consts(a)
    a("s_waitcnt vmcnt(0)")
    ln_stats(a, XAr, 28, 8, 9, 10, 11, 46)
    stat_exchange(a, 8, 9, L_ST, 0)
    ln_finish(a, XAr, 28, 8, 9, 72)
    a("s_mul_i32 s47, s43, 7")
    for k in range(7):
        sk = a.newlabel("k3sk")
        a(f"s_add_u32 s44, s47, {k}"); a("s_lshr_b32 s44, s44, 1"); a("s_cmp_lg_u32 s44, s41"); a(f"s_cbranch_scc1 {sk}")
        a(f"buffer_store_dwordx4 v[{XAr+4*k}:{XAr+4*k+3}], v12, s[16:19], 0 offen offset:{k*64}")
        a.label(sk)
    ln_stats(a, XAr, 28, 8, 9, 10, 11, 46)
    stat_exchange(a, 8, 9, L_ST, 1)
    ln_finish(a, XAr, 28, 8, 9, 72)
    ACC = 64
    splitk_gemm7(a, XAr, ACC, [80, 96], L_W)
    T = 16
    half_exchange(a, ACC, L_RED, T)
    gelu_pairs(a, list(range(T, T + 8)), 32)
    pack8(a, T, 24)
    tile_voff(a, 12)
    a("buffer_store_dwordx4 v[24:27], v12, s[20:23], 0 offen")
    a.label(done)
    a("s_endpgm")

def k4_w2(a, layer):
    done = a.newlabel("k4done")
    a("s_load_dwordx2 s[6:7], s[0:1], 88")
    common_prologue(a, 224, done)
    a("s_waitcnt lgkmcnt(0)")
    rbcb(a)
    L_W, L_RED = 0, 59392
    srd(a, 8, 6, HB[layer], XBYTES)
    a("s_mul_i32 s44, s41, 57344")
    srd_soff(a, 12, 6, WP2, 44, 57344)
    srd(a, 16, 6, XN[layer], XBYTES)
    srd(a, 20, 6, X1[layer], XBYTES)
    a("s_mul_i32 s46, s3, 7")
    dma_frags(a, 12, 46, 7, L_W, 44)
    XAr = 16
    a("s_lshl_b32 s44, s40, 6"); a("s_lshl_b32 s45, s42, 4"); a("s_add_u32 s44, s44, s45")
    a("v_add_u32 v12, s44, v3")
    a("v_mul_u32_u24 v12, 896, v12")
    a("v_lshl_add_u32 v12, v4, 4, v12")
    a("s_mul_i32 s44, s43, 448")
    a("v_add_u32 v12, s44, v12")
    a("v_subrev_u32 v13, 896, v12")
    a("v_add_u32 v14, 896, v12")
    a("v_subrev_u32 v15, 1792, v12")
    a("v_add_u32 v11, 1792, v12")
    a("v_cmp_gt_u32 s[52:53], 2, v4")
    hi = a.newlabel("k4hi"); jn = a.newlabel("k4jn")
    a("s_cmp_eq_u32 s43, 1"); a(f"s_cbranch_scc1 {hi}")
    a("v_cndmask_b32 v10, v14, v13, s[52:53]")
    for k in range(7):
        base = 13 if k < 3 else (10 if k == 3 else 14)
        a(f"buffer_load_dwordx4 v[{XAr+4*k}:{XAr+4*k+3}], v{base}, s[8:11], 0 offen offset:{k*64}")
    a(f"s_branch {jn}")
    a.label(hi)
    a("v_cndmask_b32 v10, v11, v15, s[52:53]")
    for k in range(7):
        base = 15 if k < 3 else (10 if k == 3 else 11)
        a(f"buffer_load_dwordx4 v[{XAr+4*k}:{XAr+4*k+3}], v{base}, s[8:11], 0 offen offset:{k*64}")
    a.label(jn)
    XT = 60
    tile_voff(a, 12)
    a(f"buffer_load_dwordx4 v[{XT}:{XT+3}], v12, s[16:19], 0 offen")
    a("s_waitcnt vmcnt(0)")
    a("s_barrier")
    ACC = 64
    splitk_gemm7(a, XAr, ACC, [80, 96], L_W)
    T = 16
    half_exchange(a, ACC, L_RED, T)
    round8(a, T)
    unpack_add(a, T, XT)
    pack8(a, T, 24)
    a("buffer_store_dwordx4 v[24:27], v12, s[20:23], 0 offen")
    a.label(done)
    a("s_endpgm")

def k5_w3(a, layer):
    done = a.newlabel("k5done")
    a("s_load_dwordx2 s[6:7], s[0:1], 88")
    common_prologue(a, 256, done)
    a("s_waitcnt lgkmcnt(0)")
    a("s_lshr_b32 s40, s2, 4")
    a("s_and_b32 s41, s2, 15")
    srd(a, 8, 6, X1[layer], XBYTES)
    a("s_mul_i32 s44, s41, 100352")
    srd_soff(a, 12, 6, WP3, 44, 100352)
    srd(a, 20, 6, H2[layer], S * F * 2)
    a("s_mul_i32 s46, s3, 12")
    dma_frags(a, 12, 46, 12, 0, 44)
    sk = a.newlabel("k5sk")
    a("s_cmp_lg_u32 s3, 0"); a(f"s_cbranch_scc1 {sk}")
    a("s_mov_b32 s46, 96")
    dma_frags(a, 12, 46, 2, 0, 44)
    a.label(sk)
    XAr = 16
    a("s_lshl_b32 s44, s40, 7"); a("s_lshl_b32 s45, s3, 4"); a("s_add_u32 s47, s44, s45")
    a("v_add_u32 v6, s47, v3")
    a("v_mul_u32_u24 v6, 896, v6")
    a("v_lshl_add_u32 v6, v4, 4, v6")
    for ks in range(14):
        a(f"buffer_load_dwordx4 v[{XAr+4*ks}:{XAr+4*ks+3}], v6, s[8:11], 0 offen offset:{ks*64}")
    a("s_mov_b32 s46, 0x3f803f80")
    gelu_consts(a)
    a("s_waitcnt vmcnt(0)")
    ln_stats(a, XAr, 56, 8, 9, 10, 11, 46)
    ln_finish(a, XAr, 56, 8, 9, 72)
    a("s_barrier")
    WB = [84, 112]; ACC = 140
    def rd(ks, s):
        for nt in range(7):
            ad, o = lds_frag(nt * 14 + ks)
            a(f"ds_read_b128 v[{WB[s]+4*nt}:{WB[s]+4*nt+3}], {ad} offset:{o}")
    rd(0, 0)
    for ks in range(14):
        s = ks & 1
        if ks < 13:
            rd(ks + 1, 1 - s); a("s_waitcnt lgkmcnt(7)")
        else:
            a("s_waitcnt lgkmcnt(0)")
        for nt in range(7):
            c = "0" if ks == 0 else f"v[{ACC+4*nt}:{ACC+4*nt+3}]"
            a(f"v_mfma_f32_16x16x32_bf16 v[{ACC+4*nt}:{ACC+4*nt+3}], v[{WB[s]+4*nt}:{WB[s]+4*nt+3}], v[{XAr+4*ks}:{XAr+4*ks+3}], {c}")
    gelu_pairs(a, list(range(ACC, ACC + 28)), 32)
    for i in range(14):
        a(f"v_cvt_pk_bf16_f32 v{16+i}, v{ACC+2*i}, v{ACC+2*i+1}")
    a("v_add_u32 v6, s47, v3")
    a("v_mul_u32_u24 v6, 3584, v6")
    a("v_mul_u32_u24 v7, 56, v4")
    a("v_add_u32 v6, v6, v7")
    a("s_mul_i32 s44, s41, 224")
    for i in range(7):
        a(f"buffer_store_dwordx2 v[{16+2*i}:{17+2*i}], v6, s[20:23], s44 offen offset:{i*8}")
    a.label(done)
    a("s_endpgm")

def k6_w4(a, layer):
    done = a.newlabel("k6done")
    a("s_load_dwordx2 s[6:7], s[0:1], 88")
    a("s_load_dwordx2 s[4:5], s[0:1], 72")
    common_prologue(a, 224, done)
    a("s_waitcnt lgkmcnt(0)")
    rbcb(a)
    SLOT = 57344
    L_RED = 2 * SLOT
    srd(a, 8, 6, H2[layer], S * F * 2)
    a("s_mul_i32 s44, s41, 229376")
    srd_soff(a, 12, 6, WP4, 44, 229376)
    srd(a, 16, 6, X1[layer], XBYTES)
    srd(a, 20, 6, XA[layer], XBYTES)
    if layer == 0: srd(a, 24, 6, XB0, XBYTES)
    else: srd(a, 24, 4, 0, XBYTES)
    a("s_lshr_b32 s44, s3, 1"); a("s_and_b32 s45, s3, 1")
    a("s_mul_i32 s46, s44, 56"); a("s_mul_i32 s47, s45, 28"); a("s_add_u32 s46, s46, s47"); a("s_lshl_b32 s46, s46, 10")
    a("s_mul_i32 s47, s3, 7168")
    def dma_chunk(c):
        a(f"s_add_u32 s44, s46, {c*7168}")
        a(f"s_add_u32 s45, s47, {(c&1)*SLOT}")
        a("s_mov_b32 m0, s45")
        for k in range(4):
            a(f"buffer_load_dwordx4 v2, s[12:15], s44 offen offset:{k*1024} lds")
        a("s_add_u32 s44, s44, 4096"); a("s_add_u32 s45, s45, 4096")
        a("s_mov_b32 m0, s45")
        for k in range(3):
            a(f"buffer_load_dwordx4 v2, s[12:15], s44 offen offset:{k*1024} lds")
    dma_chunk(0)
    dma_chunk(1)
    XAr = 16
    a("s_lshl_b32 s44, s40, 6"); a("s_lshl_b32 s45, s42, 4"); a("s_add_u32 s44, s44, s45")
    a("v_add_u32 v6, s44, v3")
    a("v_mul_u32_u24 v6, 3584, v6")
    a("v_lshl_add_u32 v6, v4, 4, v6")
    a("s_mul_i32 s44, s43, 1792")
    a("v_add_u32 v6, s44, v6")
    for k in range(28):
        a(f"buffer_load_dwordx4 v[{XAr+4*k}:{XAr+4*k+3}], v6, s[8:11], 0 offen offset:{k*64}")
    XT1, XT2 = 176, 180
    tile_voff(a, 12)
    a(f"buffer_load_dwordx4 v[{XT1}:{XT1+3}], v12, s[16:19], 0 offen")
    a(f"buffer_load_dwordx4 v[{XT2}:{XT2+3}], v12, s[20:23], 0 offen")
    ACC = 128; WB = [144, 160]
    a("s_mul_i32 s44, s43, 7168")
    a("v_add_u32 v8, s44, v2")
    a(f"v_add_u32 v9, {SLOT}, v8")
    for c in range(4):
        if c == 0: a("s_waitcnt vmcnt(0)")
        elif c == 1: a("s_waitcnt vmcnt(7)")
        elif c == 2: a("s_waitcnt vmcnt(7)")
        else: a("s_waitcnt vmcnt(0)")
        a("s_barrier")
        vb = "v8" if (c & 1) == 0 else "v9"
        def rd(k, s):
            for nt in range(4):
                a(f"ds_read_b128 v[{WB[s]+4*nt}:{WB[s]+4*nt+3}], {vb} offset:{(nt*14+k)*1024}")
        rd(0, 0)
        for k in range(7):
            s = k & 1
            if k < 6:
                rd(k + 1, 1 - s); a("s_waitcnt lgkmcnt(4)")
            else:
                a("s_waitcnt lgkmcnt(0)")
            kk = c * 7 + k
            for nt in range(4):
                cc = "0" if kk == 0 else f"v[{ACC+4*nt}:{ACC+4*nt+3}]"
                a(f"v_mfma_f32_16x16x32_bf16 v[{ACC+4*nt}:{ACC+4*nt+3}], v[{WB[s]+4*nt}:{WB[s]+4*nt+3}], v[{XAr+4*kk}:{XAr+4*kk+3}], {cc}")
        if c < 2:
            a("s_barrier")
            dma_chunk(c + 2)
    T = 16
    half_exchange(a, ACC, L_RED, T)
    round8(a, T)
    unpack_add(a, T, XT1)
    round8(a, T)
    unpack_add(a, T, XT2)
    pack8(a, T, 24)
    a("buffer_store_dwordx4 v[24:27], v12, s[24:27], 0 offen")
    a.label(done)
    a("s_endpgm")

KERNELS = [
    ("prep", k0_prep, None, 256, 0, 32),
    ("qkv", k1_qkv, "L", 256, 88064, 160),
    ("attno", k2_attn_out, "L", 224, 149504, 168),
    ("w1", k3_w1, "L", 224, 75776, 112),
    ("w2", k4_w2, "L", 224, 75776, 112),
    ("w3", k5_w3, "L", 256, 100352, 168),
    ("w4", k6_w4, "L", 224, 131072, 184),
]

def build_multi(extra_empty=0, upto=None):
    hdr = open("cdna_kernels/" + NAME + ".s.ref").read().split("; Override launch")[0]
    launches = []
    bodies = []
    kds = []
    seq = [(KERNELS[0], None)] + [(k, l) for l in range(2) for k in KERNELS[1:]]
    if upto is not None: seq = seq[:upto]
    for (nm, fn, lay, nwg, lds, nv), layer in seq:
        kname = f"{nm}{'' if layer is None else layer}_kernel"
        launches.append(f"; @launch kernel={kname} grid=({nwg},1,1) block=(512,1,1) lds={lds}")
        a = Asm(); a.uid = len(bodies) * 1000
        if layer is None: fn(a)
        else: fn(a, layer)
        body = fix_hazards(a.lines)
        bodies.append(f".globl {kname}\n.p2align 8\n.type {kname},@function\n{kname}:\n" + "\n".join(body) + "\n")
        kds.append(f""".p2align 6
.amdhsa_kernel {kname}
  .amdhsa_next_free_vgpr {nv}
  .amdhsa_next_free_sgpr 96
  .amdhsa_accum_offset {(nv+3)//4*4}
  .amdhsa_group_segment_fixed_size 0
  .amdhsa_kernarg_size 96
  .amdhsa_user_sgpr_count 2
  .amdhsa_user_sgpr_kernarg_segment_ptr 1
  .amdhsa_system_sgpr_workgroup_id_x 1
.end_amdhsa_kernel
""")
    if extra_empty:
        kname = "empty_kernel"
        for _ in range(extra_empty):
            launches.append(f"; @launch kernel={kname} grid=(256,1,1) block=(512,1,1) lds=0")
        bodies.append(f".globl {kname}\n.p2align 8\n.type {kname},@function\n{kname}:\n    s_endpgm\n")
        kds.append(f""".p2align 6
.amdhsa_kernel {kname}
  .amdhsa_next_free_vgpr 8
  .amdhsa_next_free_sgpr 16
  .amdhsa_accum_offset 8
  .amdhsa_group_segment_fixed_size 0
  .amdhsa_kernarg_size 96
  .amdhsa_user_sgpr_count 2
  .amdhsa_user_sgpr_kernarg_segment_ptr 1
  .amdhsa_system_sgpr_workgroup_id_x 1
.end_amdhsa_kernel
""")
    return hdr + "\n".join(launches) + '\n.amdgcn_target "amdgcn-amd-amdhsa--gfx950"\n.text\n' + "".join(bodies) + '.section .rodata,"a"\n' + "".join(kds)

if __name__ == "__main__":
    out = sys.argv[1] if len(sys.argv) > 1 else "cdna_kernels/" + NAME + ".s"
    extra = int(sys.argv[2]) if len(sys.argv) > 2 else 0
    open(out, "w").write(build_multi(extra))
    print("ws used", WS_USED)
```

```python
import sys
from asmlib import *
import struct

NAME = "interleave_layers__linear_kernel_hedgehog__mixer_s_mlp__prompt"
S, D, F, H, DH = 2048, 448, 1792, 16, 28
XBYTES = S * D * 2
off = 0
def region(n):
    global off
    o = off; off += (n + 255) // 256 * 256; return o
HEADW = 86 * 1024
WPQKV = region(16 * HEADW)
WPO = region(28 * 14 * 1024)
WP1 = region(28 * 14 * 1024)
WP2 = region(28 * 14 * 1024)
WP3 = region(112 * 14 * 1024)
WP4 = region(28 * 56 * 1024)
NFRAG = off // 1024
KVACC = [region(16 * 8192) for _ in range(2)]
FLG = region(16384)
ZERO_BYTES = 2 * 131072 + 16384
assert FLG == KVACC[0] + 262144
OB = [region(XBYTES) for _ in range(2)]
XA = [region(XBYTES) for _ in range(2)]
XN = [region(XBYTES) for _ in range(2)]
HB = [region(XBYTES) for _ in range(2)]
X1 = [region(XBYTES) for _ in range(2)]
H2 = [region(S * F * 2) for _ in range(2)]
XB0 = region(XBYTES)
STAMPS = region(65536)
WS_USED = off
F_KV, F_O, F_XA, F_H, F_X1, F_H2, F_XB, F_LAYER = 0, 256, 512, 768, 1024, 1280, 1536, 1792

LOG2E = 1.4426950408889634
def f2u(x): return struct.unpack("<I", struct.pack("<f", x))[0]

WS, AX, OUT, DBG = 94, 96, 98, 92
RB7, CB7, RB16, C16, TT, KH = 84, 85, 86, 87, 88, 89
M_G3, M_M12GE, M_M12, M_GLT2 = 52, 54, 56, 58
ONES, L2E = 60, 61
SC = " sc1"
SPIN_MAX = 1 << 16

STAMP = False
stamp_idx = [0]
def stamp(a, name=""):
    if not STAMP: return
    i = stamp_idx[0]; stamp_idx[0] += 1
    sk = a.newlabel("st")
    a("s_memtime s[74:75]")
    a("s_cmp_lg_u32 s2, 5"); a(f"s_cbranch_scc1 {sk}")
    a("s_waitcnt lgkmcnt(0)")
    srd(a, 76, WS, STAMPS, 65536)
    a("s_lshl_b32 s75, s3, 2")
    a("v_mov_b32 v250, s74"); a("v_mov_b32 v251, s75")
    a(f"buffer_store_dword v250, v251, s[76:79], 0 offen offset:{i*32}")
    a.label(sk)
    STAMP_NAMES.append(name)
STAMP_NAMES = []

def srd(a, d, base, offset, size):
    if offset:
        a(f"s_add_u32 s{d}, s{base}, {offset}")
        a(f"s_addc_u32 s{d+1}, s{base+1}, 0")
    else:
        a(f"s_mov_b32 s{d}, s{base}")
        a(f"s_mov_b32 s{d+1}, s{base+1}")
    a(f"s_mov_b32 s{d+2}, {size}")
    a(f"s_mov_b32 s{d+3}, 0x00020000")

def srd_soff(a, d, base, offset, soff, size):
    a(f"s_add_u32 s{d}, s{base}, s{soff}")
    a(f"s_addc_u32 s{d+1}, s{base+1}, 0")
    if offset:
        a(f"s_add_u32 s{d}, s{d}, {offset}")
        a(f"s_addc_u32 s{d+1}, s{d+1}, 0")
    a(f"s_mov_b32 s{d+2}, {size}")
    a(f"s_mov_b32 s{d+3}, 0x00020000")

def lds_frag(idx):
    if idx < 64: return ("v2", idx * 1024)
    assert idx < 128
    return ("v5", (idx - 64) * 1024)

def allred_groups(a, op, r, t):
    a(f"v_mov_b32 v{t}, v{r}")
    a(f"v_permlane32_swap_b32 v{r}, v{t}")
    a(f"{op} v{r}, v{r}, v{t}")
    a(f"v_mov_b32 v{t}, v{r}")
    a(f"v_permlane16_swap_b32 v{r}, v{t}")
    a(f"{op} v{r}, v{r}, v{t}")

def allred_row16(a, op, regs):
    for rot in (8, 4, 2, 1):
        for r in regs:
            a(f"{op}_dpp v{r}, v{r}, v{r} row_ror:{rot} row_mask:0xf bank_mask:0xf")

def bf16_round(a, r):
    a(f"v_cvt_pk_bf16_f32 v{r}, v{r}, v{r}")
    a(f"v_and_b32 v{r}, 0xffff0000, v{r}")

def ln_stats(a, xa, n, s1, s2, s1b, s2b):
    a(f"v_mov_b32 v{s1}, 0"); a(f"v_mov_b32 v{s2}, 0"); a(f"v_mov_b32 v{s1b}, 0"); a(f"v_mov_b32 v{s2b}, 0")
    for i in range(n):
        d1, d2 = (s1, s2) if i % 2 == 0 else (s1b, s2b)
        a(f"v_dot2_f32_bf16 v{d1}, v{xa+i}, s{ONES}, v{d1}")
        a(f"v_dot2_f32_bf16 v{d2}, v{xa+i}, v{xa+i}, v{d2}")
    a(f"v_add_f32 v{s1}, v{s1}, v{s1b}")
    a(f"v_add_f32 v{s2}, v{s2}, v{s2b}")
    allred_groups(a, "v_add_f32", s1, s1b)
    allred_groups(a, "v_add_f32", s2, s2b)

def ln_finish(a, xa, n, s1, s2, tp, ntp=4):
    R, M = tp, tp + 2
    a(f"v_mul_f32 v{s1}, {f2u(1.0/448):#x}, v{s1}")
    a(f"v_mul_f32 v{s2}, {f2u(1.0/448):#x}, v{s2}")
    a(f"v_fma_f32 v{s2}, -v{s1}, v{s1}, v{s2}")
    a(f"v_max_f32 v{s2}, 0, v{s2}")
    bf16_round(a, s1)
    bf16_round(a, s2)
    a(f"v_add_f32 v{s2}, {f2u(1e-5):#x}, v{s2}")
    bf16_round(a, s2)
    a(f"v_sqrt_f32 v{s2}, v{s2}")
    bf16_round(a, s2)
    a(f"v_rcp_f32 v{R}, v{s2}")
    a(f"v_mul_f32 v{M}, v{s1}, v{R}")
    a(f"v_sub_f32 v{M}, 0, v{M}")
    for i in range(n):
        t = tp + 4 + 2 * (i % ntp)
        a(f"v_lshlrev_b32 v{t}, 16, v{xa+i}")
        a(f"v_and_b32 v{t+1}, 0xffff0000, v{xa+i}")
        a(f"v_pk_fma_f32 v[{t}:{t+1}], v[{t}:{t+1}], v[{R}:{R+1}], v[{M}:{M+1}] op_sel_hi:[1,0,0]")
        a(f"v_cvt_pk_bf16_f32 v{xa+i}, v{t}, v{t+1}")

def gelu_pairs(a, regs, tmp):
    n = len(regs)
    for i in range(0, n, 2):
        r0, r1 = regs[i], regs[i + 1]
        a(f"v_cvt_pk_bf16_f32 v{r1}, v{r0}, v{r1}")
        a(f"v_lshlrev_b32 v{r0}, 16, v{r1}")
        a(f"v_and_b32 v{r1}, 0xffff0000, v{r1}")
    for base in range(0, n, 4):
        grp = regs[base:base + 4]
        for k, r in enumerate(grp): a(f"v_mul_f32 v{tmp+k}, v{r}, v{r}")
        for k, r in enumerate(grp): a(f"v_fma_f32 v{tmp+k}, v{tmp+k}, s90, 1.0")
        for k, r in enumerate(grp): a(f"v_mul_f32 v{tmp+k}, v{tmp+k}, v{r}")
        for k, r in enumerate(grp): a(f"v_mul_f32 v{tmp+k}, s91, v{tmp+k}")
        for k, r in enumerate(grp): a(f"v_exp_f32 v{tmp+k}, v{tmp+k}")
        for k, r in enumerate(grp): a(f"v_add_f32 v{tmp+k}, 1.0, v{tmp+k}")
        for k, r in enumerate(grp): a(f"v_rcp_f32 v{tmp+k}, v{tmp+k}")
        for k, r in enumerate(grp): a(f"v_mul_f32 v{r}, v{r}, v{tmp+k}")

def dma_frags(a, srdW, first_s, count, lds_base, tmp_s):
    a(f"s_lshl_b32 s{tmp_s}, s{first_s}, 10")
    a(f"s_add_u32 s{tmp_s+1}, s{tmp_s}, {lds_base}")
    i = 0
    while i < count:
        a(f"s_mov_b32 m0, s{tmp_s+1}")
        for k in range(min(4, count - i)):
            a(f"buffer_load_dwordx4 v2, s[{srdW}:{srdW+3}], s{tmp_s} offen offset:{k*1024}{SC} lds")
        i += 4
        if i < count:
            a(f"s_add_u32 s{tmp_s}, s{tmp_s}, 4096")
            a(f"s_add_u32 s{tmp_s+1}, s{tmp_s+1}, 4096")

def flag_srd(a):
    srd(a, 28, WS, FLG, 16384)

def signal(a, idx_s):
    sk = a.newlabel("sig")
    a("s_waitcnt vmcnt(0)")
    a("s_barrier")
    a("s_cmp_lg_u32 s3, 0"); a(f"s_cbranch_scc1 {sk}")
    flag_srd(a)
    a(f"s_lshl_b32 s48, s{idx_s}, 2")
    a("v_mov_b32 v6, 1"); a("v_mov_b32 v7, s48")
    a("s_mov_b64 exec, 1")
    a(f"buffer_store_dword v6, v7, s[28:31], 0 offen{SC}")
    a("s_mov_b64 exec, -1")
    a.label(sk)

def wait_flags(a, base_s, mode):
    sk = a.newlabel("wsk"); lp = a.newlabel("wlp"); dn = a.newlabel("wdn")
    a("s_cmp_lg_u32 s3, 0"); a(f"s_cbranch_scc1 {sk}")
    flag_srd(a)
    a("s_mov_b32 s50, 0")
    if mode[0] == 'x4':
        a(f"s_lshl_b32 s48, s{base_s}, 2")
        a("v_add_u32 v6, s48, v2")
        a.label(lp)
        a(f"buffer_load_dwordx4 v[8:11], v6, s[28:31], 0 offen{SC}")
        a("s_waitcnt vmcnt(0)")
        a("v_min_u32 v8, v8, v9"); a("v_min_u32 v10, v10, v11"); a("v_min_u32 v8, v8, v10")
        a("v_cmp_ne_u32 vcc, 0, v8")
        a("s_cmp_eq_u64 vcc, -1"); a(f"s_cbranch_scc1 {dn}")
    else:
        a(f"v_add_u32 v6, s{base_s}, v1")
        if mode[0] == 'n':
            a(f"v_cmp_le_u32 s[48:49], {mode[1]}, v1")
        elif mode[0] == 'rows':
            a("v_and_b32 v7, 7, v1")
            a("v_cmp_eq_u32 s[48:49], 7, v7")
            a(f"v_cmp_le_u32 vcc, {mode[1]*8}, v1")
            a("s_or_b64 s[48:49], s[48:49], vcc")
        elif mode[0] == 'rb3':
            a("v_and_b32 v7, 7, v1")
            a("v_cmp_eq_u32 s[48:49], 7, v7")
            a("v_cmp_le_u32 vcc, 24, v1")
            a("s_or_b64 s[48:49], s[48:49], vcc")
            a("v_lshrrev_b32 v7, 3, v1")
            a(f"v_add_u32 v7, s{mode[1]}, v7")
            a("v_cmp_eq_u32 vcc, 0, v7")
            a("s_or_b64 s[48:49], s[48:49], vcc")
            a("v_cmp_lt_u32 vcc, 32, v7")
            a("s_or_b64 s[48:49], s[48:49], vcc")
        a("v_lshlrev_b32 v6, 2, v6")
        a("v_cndmask_b32 v6, v6, 0, s[48:49]")
        a.label(lp)
        a(f"buffer_load_dword v8, v6, s[28:31], 0 offen{SC}")
        a("s_waitcnt vmcnt(0)")
        a("v_cmp_ne_u32 vcc, 0, v8")
        a("s_or_b64 vcc, vcc, s[48:49]")
        a("s_cmp_eq_u64 vcc, -1"); a(f"s_cbranch_scc1 {dn}")
    a("s_sleep 1")
    a("s_add_u32 s50, s50, 1")
    a(f"s_cmp_lt_u32 s50, {SPIN_MAX}"); a(f"s_cbranch_scc1 {lp}")
    a.label(dn)
    a.label(sk)
    a("s_barrier")

def pre_k1(a):
    a(f"s_mul_i32 s42, s{C16}, {HEADW}")
    srd_soff(a, 12, WS, WPQKV, 42, HEADW)
    a("s_mul_i32 s43, s3, 11")
    skip = a.newlabel("k1skip")
    dma_frags(a, 12, 43, 9, 0, 44)
    a("s_cmp_eq_u32 s3, 7"); a(f"s_cbranch_scc1 {skip}")
    a("s_add_u32 s43, s43, 9")
    dma_frags(a, 12, 43, 2, 0, 44)
    a.label(skip)

def pre_w56(a, WP):
    a(f"s_mul_i32 s44, s{CB7}, 57344")
    srd_soff(a, 12, WS, WP, 44, 57344)
    a("s_mul_i32 s46, s3, 7")
    dma_frags(a, 12, 46, 7, 0, 44)

def pre_k5(a):
    a(f"s_mul_i32 s44, s{C16}, 100352")
    srd_soff(a, 12, WS, WP3, 44, 100352)
    a("s_mul_i32 s46, s3, 12")
    dma_frags(a, 12, 46, 12, 0, 44)
    sk = a.newlabel("k5sk")
    a("s_cmp_lg_u32 s3, 0"); a(f"s_cbranch_scc1 {sk}")
    a("s_mov_b32 s46, 96")
    dma_frags(a, 12, 46, 2, 0, 44)
    a.label(sk)

SLOT = 57344
def k6_setup(a):
    a(f"s_mul_i32 s44, s{CB7}, 229376")
    srd_soff(a, 12, WS, WP4, 44, 229376)
    a("s_lshr_b32 s44, s3, 1"); a("s_and_b32 s45, s3, 1")
    a("s_mul_i32 s46, s44, 56"); a("s_mul_i32 s47, s45, 28"); a("s_add_u32 s46, s46, s47"); a("s_lshl_b32 s46, s46, 10")
    a("s_mul_i32 s47, s3, 7168")
def k6_chunk(a, c):
    a(f"s_add_u32 s44, s46, {c*7168}")
    a(f"s_add_u32 s45, s47, {(c&1)*SLOT}")
    a("s_mov_b32 m0, s45")
    for k in range(4):
        a(f"buffer_load_dwordx4 v2, s[12:15], s44 offen offset:{k*1024}{SC} lds")
    a("s_add_u32 s44, s44, 4096"); a("s_add_u32 s45, s45, 4096")
    a("s_mov_b32 m0, s45")
    for k in range(3):
        a(f"buffer_load_dwordx4 v2, s[12:15], s44 offen offset:{k*1024}{SC} lds")
def pre_k6(a):
    k6_setup(a); k6_chunk(a, 0); k6_chunk(a, 1)

def prep(a):
    a("s_load_dwordx4 s[4:7], s[0:1], 8")
    a("s_load_dwordx2 s[36:37], s[0:1], 24")
    a("s_load_dwordx4 s[40:43], s[0:1], 40")
    a("s_load_dwordx4 s[44:47], s[0:1], 56")
    a("s_waitcnt lgkmcnt(0)")
    srd(a, 8, WS, KVACC[0], ZERO_BYTES)
    a("s_lshl_b32 s50, s2, 9")
    a("v_add_u32 v6, s50, v0")
    a("v_lshlrev_b32 v6, 2, v6")
    a("v_mov_b32 v7, 0")
    a(f"buffer_store_dword v7, v6, s[8:11], 0 offen{SC}")
    srd(a, 8, WS, 0, NFRAG * 1024)
    a("v_lshrrev_b32 v6, 2, v3"); a("v_and_b32 v7, 3, v3")
    a("v_lshl_add_u32 v8, v6, 3, v7")
    a("v_mov_b32 v15, 0x40000000")
    a("s_lshl_b32 s50, s2, 3"); a("s_add_u32 s50, s50, s3")
    loop = a.newlabel("k0loop"); std = a.newlabel("k0std"); perm = a.newlabel("k0perm"); store = a.newlabel("k0store"); fin = a.newlabel("k0fin")
    t_o, t_1, t_2, t_3, t_4, t_phi = [a.newlabel("k0t") for _ in range(6)]
    colgen = a.newlabel("k0col"); w3n = a.newlabel("k0w3n")
    a.label(loop)
    a(f"s_cmp_ge_u32 s50, {NFRAG}"); a(f"s_cbranch_scc1 {fin}")
    b_o = 1376; b_1 = b_o + 392; b_2 = b_1 + 392; b_3 = b_2 + 392; b_4 = b_3 + 1568
    assert b_4 + 1568 == NFRAG
    a(f"s_cmp_ge_u32 s50, {b_4}"); a(f"s_cbranch_scc1 {t_4}")
    a(f"s_cmp_ge_u32 s50, {b_3}"); a(f"s_cbranch_scc1 {t_3}")
    a(f"s_cmp_ge_u32 s50, {b_2}"); a(f"s_cbranch_scc1 {t_2}")
    a(f"s_cmp_ge_u32 s50, {b_1}"); a(f"s_cbranch_scc1 {t_1}")
    a(f"s_cmp_ge_u32 s50, {b_o}"); a(f"s_cbranch_scc1 {t_o}")
    a(f"s_mov_b32 s62, {magic(86)}")
    a("s_mul_hi_u32 s63, s50, s62")
    a("s_mul_i32 s64, s63, 86")
    a("s_sub_u32 s64, s50, s64")
    a("s_cmp_ge_u32 s64, 84"); a(f"s_cbranch_scc1 {t_phi}")
    a(f"s_mov_b32 s62, {magic(14)}")
    a("s_mul_hi_u32 s65, s64, s62")
    a("s_mul_i32 s66, s65, 14")
    a("s_sub_u32 s66, s64, s66")
    a("s_lshr_b32 s67, s65, 1")
    a("s_and_b32 s68, s65, 1")
    a("s_mul_i32 s67, s67, 448")
    a("s_mul_i32 s69, s63, 28")
    a("s_add_u32 s67, s67, s69")
    a("s_lshl_b32 s69, s68, 4")
    a("s_add_u32 s67, s67, s69")
    srd(a, 12, 4, 0, 448 * 1344 * 2)
    a("s_mov_b32 s70, 2688")
    a("s_mul_i32 s71, s66, 32*2688")
    a("v_add_u32 v10, s67, v3")
    a("v_lshlrev_b32 v10, 1, v10")
    a("v_mul_u32_u24 v11, 8*2688, v4")
    a("v_add_u32 v10, v10, v11")
    a("s_cmp_eq_u32 s68, 0"); a(f"s_cbranch_scc1 {std}")
    a(f"v_cndmask_b32 v10, v10, v15, s[{M_M12GE}:{M_M12GE+1}]")
    a(f"s_branch {std}")
    a.label(t_phi)
    a("s_sub_u32 s68, s64, 84")
    srd(a, 12, 6, 0, 16 * 784 * 2)
    a("s_mov_b32 s70, 56")
    a("s_mul_i32 s71, s63, 1568")
    a("s_lshl_b32 s69, s68, 4")
    a("v_add_u32 v10, s69, v3")
    a("v_lshlrev_b32 v10, 1, v10")
    a("v_mul_u32_u24 v11, 4*56, v4")
    a("v_add_u32 v10, v10, v11")
    a("s_cmp_eq_u32 s68, 0"); a(f"s_cbranch_scc1 {perm}")
    a(f"v_cndmask_b32 v10, v10, v15, s[{M_M12GE}:{M_M12GE+1}]")
    a(f"s_branch {perm}")
    for lab, b, ptr in ((t_o, b_o, 36), (t_1, b_1, 40), (t_2, b_2, 42)):
        a.label(lab)
        a(f"s_sub_u32 s64, s50, {b}")
        a(f"s_mov_b32 s62, {magic(14)}")
        a("s_mul_hi_u32 s65, s64, s62")
        a("s_mul_i32 s66, s65, 14")
        a("s_sub_u32 s66, s64, s66")
        srd(a, 12, ptr, 0, 448 * 448 * 2)
        a(f"s_branch {colgen}")
    a.label(t_4)
    a(f"s_sub_u32 s64, s50, {b_4}")
    a(f"s_mov_b32 s62, {magic(56)}")
    a("s_mul_hi_u32 s65, s64, s62")
    a("s_mul_i32 s66, s65, 56")
    a("s_sub_u32 s66, s64, s66")
    srd(a, 12, 46, 0, 1792 * 448 * 2)
    a.label(colgen)
    a("s_mov_b32 s70, 896")
    a("s_mul_i32 s71, s66, 32*896")
    a("s_lshr_b32 s67, s65, 1"); a("s_lshl_b32 s67, s67, 5")
    a("s_and_b32 s68, s65, 1"); a("s_lshl_b32 s68, s68, 2")
    a("s_add_u32 s67, s67, s68")
    a("v_add_u32 v10, s67, v8")
    a("v_lshlrev_b32 v10, 1, v10")
    a("v_mul_u32_u24 v11, 8*896, v4")
    a("v_add_u32 v10, v10, v11")
    a(f"s_branch {std}")
    a.label(t_3)
    a(f"s_sub_u32 s64, s50, {b_3}")
    a(f"s_mov_b32 s62, {magic(14)}")
    a("s_mul_hi_u32 s65, s64, s62")
    a("s_mul_i32 s66, s65, 14")
    a("s_sub_u32 s66, s64, s66")
    a(f"s_mov_b32 s62, {magic(7)}")
    a("s_mul_hi_u32 s67, s65, s62")
    a("s_mul_i32 s68, s67, 7")
    a("s_sub_u32 s68, s65, s68")
    srd(a, 12, 44, 0, 448 * 1792 * 2)
    a("s_mov_b32 s70, 3584")
    a("s_mul_i32 s71, s66, 32*3584")
    a("s_mul_i32 s67, s67, 112")
    a("s_lshr_b32 s69, s68, 1"); a("s_lshl_b32 s69, s69, 5"); a("s_add_u32 s67, s67, s69")
    a("s_and_b32 s69, s68, 1"); a("s_lshl_b32 s69, s69, 2"); a("s_add_u32 s67, s67, s69")
    a("v_add_u32 v10, s67, v8")
    a("s_cmp_lg_u32 s68, 6"); a(f"s_cbranch_scc1 {w3n}")
    a("v_add_u32 v10, s67, v3")
    a.label(w3n)
    a("v_lshlrev_b32 v10, 1, v10")
    a("v_mul_u32_u24 v11, 8*3584, v4")
    a("v_add_u32 v10, v10, v11")
    a.label(std)
    for j in range(8):
        a(f"buffer_load_ushort v{20 + j}, v10, s[12:15], s71 offen")
        if j < 7: a("s_add_u32 s71, s71, s70")
    a(f"s_branch {store}")
    a.label(perm)
    a(f"v_cndmask_b32 v11, v10, v15, s[{M_G3}:{M_G3+1}]")
    a("s_mul_i32 s72, s70, 13")
    for j in range(8):
        vv = 10 if j < 4 else 11
        a(f"buffer_load_ushort v{20 + j}, v{vv}, s[12:15], s71 offen")
        if j == 3: a("s_add_u32 s71, s71, s72")
        elif j < 7: a("s_add_u32 s71, s71, s70")
    a.label(store)
    a("s_lshl_b32 s71, s50, 10")
    a("s_waitcnt vmcnt(0)")
    for i in range(4):
        a(f"v_lshl_or_b32 v{16+i}, v{21+2*i}, 16, v{20+2*i}")
    a(f"buffer_store_dwordx4 v[16:19], v2, s[8:11], s71 offen{SC}")
    a("s_add_u32 s50, s50, 2048")
    a(f"s_branch {loop}")
    a.label(fin)
    sk = a.newlabel("pbsk"); lp = a.newlabel("pblp"); dn = a.newlabel("pbdn")
    a("s_waitcnt vmcnt(0)")
    a("s_barrier")
    a("s_cmp_lg_u32 s3, 0"); a(f"s_cbranch_scc1 {sk}")
    srd(a, 28, DBG, 0, 256)
    a("s_and_b32 s48, s2, 3"); a("s_lshl_b32 s48, s48, 6")
    a("v_mov_b32 v6, 1"); a("v_mov_b32 v7, s48")
    a("s_mov_b64 exec, 1")
    a(f"buffer_atomic_add v6, v7, s[28:31], 0 offen{SC}")
    a("s_mov_b64 exec, -1")
    a("v_and_b32 v6, 3, v1"); a("v_lshlrev_b32 v6, 6, v6")
    a("s_mov_b32 s50, 0")
    a.label(lp)
    a(f"buffer_load_dword v8, v6, s[28:31], 0 offen{SC}")
    a("s_waitcnt vmcnt(0)")
    a("v_cmp_le_u32 vcc, 64, v8")
    a("s_cmp_eq_u64 vcc, -1"); a(f"s_cbranch_scc1 {dn}")
    a("s_sleep 1")
    a("s_add_u32 s50, s50, 1")
    a(f"s_cmp_lt_u32 s50, {SPIN_MAX}"); a(f"s_cbranch_scc1 {lp}")
    a.label(dn)
    a.label(sk)
    a("s_barrier")

def k1(a, layer):
    fl = layer * F_LAYER
    if layer == 1:
        a(f"s_lshl_b32 s40, s{RB16}, 4"); a(f"s_add_u32 s40, s40, {F_XB}")
        wait_flags(a, 40, ('rows', 2))
    stamp(a, f"k1.{layer} start")
    if layer == 0: srd(a, 8, AX, 0, XBYTES)
    else: srd(a, 8, WS, XB0, XBYTES)
    XAr = 16
    a(f"s_lshl_b32 s44, s{RB16}, 7"); a("s_lshl_b32 s45, s3, 4"); a("s_add_u32 s47, s44, s45")
    a("v_add_u32 v6, s47, v3")
    a("v_mul_u32_u24 v6, 896, v6")
    a("v_lshl_add_u32 v6, v4, 4, v6")
    for ks in range(14):
        a(f"buffer_load_dwordx4 v[{XAr+4*ks}:{XAr+4*ks+3}], v6, s[8:11], 0 offen offset:{ks*64}{SC}")
    a("s_waitcnt vmcnt(0)")
    stamp(a, "loaded")
    ln_stats(a, XAr, 56, 8, 9, 10, 11)
    ln_finish(a, XAr, 56, 8, 9, 72)
    a("s_barrier")
    stamp(a, "ln")
    WB = [80, 104]; ACC = 128
    def rd(ks, s):
        for mt in range(6):
            ad, o = lds_frag(mt * 14 + ks)
            a(f"ds_read_b128 v[{WB[s]+4*mt}:{WB[s]+4*mt+3}], {ad} offset:{o}")
    rd(0, 0)
    for ks in range(14):
        s = ks & 1
        if ks < 13:
            rd(ks + 1, 1 - s); a("s_waitcnt lgkmcnt(6)")
        else:
            a("s_waitcnt lgkmcnt(0)")
        xf = f"v[{XAr+4*ks}:{XAr+4*ks+3}]"
        for mt in range(6):
            wf = f"v[{WB[s]+4*mt}:{WB[s]+4*mt+3}]"
            acc = f"v[{ACC+4*mt}:{ACC+4*mt+3}]"
            c = "0" if ks == 0 else acc
            if mt < 4: a(f"v_mfma_f32_16x16x32_bf16 {acc}, {wf}, {xf}, {c}")
            else: a(f"v_mfma_f32_16x16x32_bf16 {acc}, {xf}, {wf}, {c}")
    PH = 80
    for u in range(2):
        ad, o = lds_frag(84 + u)
        a(f"ds_read_b128 v[{PH+4*u}:{PH+4*u+3}], {ad} offset:{o}")
    QF, KF = 88, 92
    for i in range(4):
        a(f"v_cvt_pk_bf16_f32 v{QF+i}, v{ACC+2*i}, v{ACC+2*i+1}")
        a(f"v_cvt_pk_bf16_f32 v{KF+i}, v{ACC+8+2*i}, v{ACC+8+2*i+1}")
    a("s_waitcnt lgkmcnt(0)")
    stamp(a, "mfma")
    PQ, PK = 96, 104
    for u in range(2):
        a(f"v_mfma_f32_16x16x32_bf16 v[{PQ+4*u}:{PQ+4*u+3}], v[{PH+4*u}:{PH+4*u+3}], v[{QF}:{QF+3}], 0")
    for u in range(2):
        a(f"v_mfma_f32_16x16x32_bf16 v[{PK+4*u}:{PK+4*u+3}], v[{KF}:{KF+3}], v[{PH+4*u}:{PH+4*u+3}], 0")
    VV = ACC + 16
    for r in range(4):
        a(f"v_cndmask_b32 v{VV+4+r}, v{VV+4+r}, 1.0, s[{M_M12}:{M_M12+1}]")
    VB = 112
    for t in range(2):
        a(f"v_cvt_pk_bf16_f32 v{VB+2*t}, v{VV+4*t}, v{VV+4*t+1}")
        a(f"v_cvt_pk_bf16_f32 v{VB+2*t+1}, v{VV+4*t+2}, v{VV+4*t+3}")
    for base in (PK, PQ):
        for i in range(0, 8, 2):
            a(f"v_cvt_pk_bf16_f32 v{base+i+1}, v{base+i}, v{base+i+1}")
            a(f"v_lshlrev_b32 v{base+i}, 16, v{base+i+1}")
            a(f"v_and_b32 v{base+i+1}, 0xffff0000, v{base+i+1}")
    G3 = f"s[{M_G3}:{M_G3+1}]"; MG = f"s[{M_M12GE}:{M_M12GE+1}]"
    KX, KN = 40, 44
    for r in range(4):
        a(f"v_max_f32 v{KX+r}, v{PK+r}, v{PK+4+r}")
        a(f"v_min_f32 v{KN+r}, v{PK+r}, v{PK+4+r}")
    for r in range(4):
        a(f"v_cndmask_b32 v{KX+r}, v{KX+r}, v{PK+r}, {MG}")
        a(f"v_cndmask_b32 v{KN+r}, v{KN+r}, v{PK+r}, {MG}")
    for rot in (8, 4, 2, 1):
        for r in range(4):
            a(f"v_max_f32_dpp v{KX+r}, v{KX+r}, v{KX+r} row_ror:{rot} row_mask:0xf bank_mask:0xf")
            a(f"v_min_f32_dpp v{KN+r}, v{KN+r}, v{KN+r} row_ror:{rot} row_mask:0xf bank_mask:0xf")
    for r in range(4):
        a(f"v_mul_f32 v{KX+r}, s{L2E}, v{KX+r}")
        a(f"v_mul_f32 v{KN+r}, s{L2E}, v{KN+r}")
    KP, KM = 48, 56
    for i in range(8):
        a(f"v_fma_f32 v{KP+i}, v{PK+i}, s{L2E}, -v{KX+(i&3)}")
        a(f"v_fma_f32 v{KM+i}, -v{PK+i}, s{L2E}, v{KN+(i&3)}")
    for i in range(8):
        a(f"v_exp_f32 v{KP+i}, v{KP+i}")
        a(f"v_exp_f32 v{KM+i}, v{KM+i}")
    for i in range(4, 8):
        a(f"v_cndmask_b32 v{KP+i}, v{KP+i}, 0, {MG}")
        a(f"v_cndmask_b32 v{KM+i}, v{KM+i}, 0, {MG}")
    for r in range(4):
        a(f"v_add_f32 v{KX+r}, v{KP+r}, v{KP+4+r}")
        a(f"v_add_f32 v{KN+r}, v{KM+r}, v{KM+4+r}")
    allred_row16(a, "v_add_f32", [KX + r for r in range(4)] + [KN + r for r in range(4)])
    for r in range(4):
        a(f"v_rcp_f32 v{KX+r}, v{KX+r}"); a(f"v_rcp_f32 v{KN+r}, v{KN+r}")
    for i in range(8):
        a(f"v_mul_f32 v{KP+i}, v{KP+i}, v{KX+(i&3)}")
        a(f"v_mul_f32 v{KM+i}, v{KM+i}, v{KN+(i&3)}")
    KA_ = 64
    for part, E in enumerate((KP, KM)):
        for u in range(2):
            d = KA_ + (part * 2 + u) * 2
            a(f"v_cvt_pk_bf16_f32 v{d}, v{E+4*u}, v{E+4*u+1}")
            a(f"v_cvt_pk_bf16_f32 v{d+1}, v{E+4*u+2}, v{E+4*u+3}")
    KV = 128
    for part in range(2):
        for t in range(2):
            for u in range(2):
                d = KV + (part * 2 + t) * 8 + u * 4
                af = KA_ + (part * 2 + u) * 2
                a(f"v_mfma_f32_16x16x16_bf16 v[{d}:{d+3}], v[{af}:{af+1}], v[{VB+2*t}:{VB+2*t+1}], 0")
    LRED = 88064
    a("v_lshlrev_b32 v6, 2, v1")
    a("s_lshl_b32 s44, s3, 13"); a(f"s_add_u32 s44, s44, {LRED}")
    a("v_add_u32 v7, s44, v6")
    for i in range(32):
        a(f"ds_write_b32 v7, v{KV+i} offset:{i*256}")
    a("s_waitcnt lgkmcnt(0)")
    a("s_barrier")
    a("s_lshl_b32 s44, s3, 10"); a(f"s_add_u32 s44, s44, {LRED}")
    a("v_add_u32 v7, s44, v6")
    RR = 128
    for i in range(4):
        for ww in range(8):
            a(f"ds_read_b32 v{RR+i*8+ww}, v7 offset:{ww*8192+i*256}")
    a("s_waitcnt lgkmcnt(0)")
    for i in range(4):
        b = RR + i * 8
        a(f"v_add_f32 v{b}, v{b}, v{b+1}"); a(f"v_add_f32 v{b+2}, v{b+2}, v{b+3}")
        a(f"v_add_f32 v{b+4}, v{b+4}, v{b+5}"); a(f"v_add_f32 v{b+6}, v{b+6}, v{b+7}")
        a(f"v_add_f32 v{b}, v{b}, v{b+2}"); a(f"v_add_f32 v{b+4}, v{b+4}, v{b+6}")
        a(f"v_add_f32 v{b}, v{b}, v{b+4}")
    srd(a, 20, WS, KVACC[layer], 131072)
    a(f"s_lshl_b32 s44, s{C16}, 13"); a("s_lshl_b32 s45, s3, 10"); a("s_add_u32 s44, s44, s45")
    for i in range(4):
        a(f"buffer_atomic_add_f32 v{RR+i*8}, v6, s[20:23], s44 offen offset:{i*256}{SC}")
    a(f"s_add_u32 s40, s2, {fl+F_KV}")
    signal(a, 40)
    stamp(a, "kv signalled")
    sk = a.newlabel("k1pre")
    a("s_cmp_ge_u32 s2, 224"); a(f"s_cbranch_scc1 {sk}")
    pre_w56(a, WPO)
    a.label(sk)
    MX, MN, T0, T1 = 8, 9, 10, 11
    a(f"v_max3_f32 v{MX}, v{PQ}, v{PQ+1}, v{PQ+2}"); a(f"v_max_f32 v{MX}, v{MX}, v{PQ+3}")
    a(f"v_min3_f32 v{MN}, v{PQ}, v{PQ+1}, v{PQ+2}"); a(f"v_min_f32 v{MN}, v{MN}, v{PQ+3}")
    a(f"v_max3_f32 v{T0}, v{PQ+4}, v{PQ+5}, v{PQ+6}"); a(f"v_max3_f32 v{T0}, v{T0}, v{PQ+7}, v{MX}")
    a(f"v_min3_f32 v{T1}, v{PQ+4}, v{PQ+5}, v{PQ+6}"); a(f"v_min3_f32 v{T1}, v{T1}, v{PQ+7}, v{MN}")
    a(f"v_cndmask_b32 v{MX}, v{T0}, v{MX}, {G3}")
    a(f"v_cndmask_b32 v{MN}, v{T1}, v{MN}, {G3}")
    allred_groups(a, "v_max_f32", MX, T0)
    allred_groups(a, "v_min_f32", MN, T1)
    a(f"v_mul_f32 v{MX}, s{L2E}, v{MX}")
    a(f"v_mul_f32 v{MN}, s{L2E}, v{MN}")
    EP, EM = 16, 24
    for i in range(8):
        a(f"v_fma_f32 v{EP+i}, v{PQ+i}, s{L2E}, -v{MX}")
        a(f"v_fma_f32 v{EM+i}, -v{PQ+i}, s{L2E}, v{MN}")
    for i in range(8):
        a(f"v_exp_f32 v{EP+i}, v{EP+i}")
        a(f"v_exp_f32 v{EM+i}, v{EM+i}")
    for i in range(4, 8):
        a(f"v_cndmask_b32 v{EP+i}, v{EP+i}, 0, {G3}")
        a(f"v_cndmask_b32 v{EM+i}, v{EM+i}, 0, {G3}")
    for E, Sg in ((EP, MX), (EM, MN)):
        a(f"v_add_f32 v{Sg}, v{E}, v{E+1}")
        for i in range(2, 8): a(f"v_add_f32 v{Sg}, v{Sg}, v{E+i}")
    allred_groups(a, "v_add_f32", MX, T0)
    allred_groups(a, "v_add_f32", MN, T1)
    a(f"v_rcp_f32 v{MX}, v{MX}"); a(f"v_rcp_f32 v{MN}, v{MN}")
    for i in range(8):
        a(f"v_mul_f32 v{EP+i}, v{EP+i}, v{MX}")
        a(f"v_mul_f32 v{EM+i}, v{EM+i}, v{MN}")
    OQ = 176
    for i in range(4):
        a(f"v_cvt_pk_bf16_f32 v{OQ+i}, v{EP+2*i}, v{EP+2*i+1}")
        a(f"v_cvt_pk_bf16_f32 v{OQ+4+i}, v{EM+2*i}, v{EM+2*i+1}")
    a(f"s_mov_b32 s40, {fl+F_KV}")
    wait_flags(a, 40, ('x4',))
    stamp(a, "kv arrived")
    KL = 16
    a("v_lshlrev_b32 v6, 2, v1")
    a("v_lshlrev_b32 v7, 6, v4"); a("v_add_u32 v7, 48, v7")
    a(f"s_lshl_b32 s44, s{C16}, 13"); a("s_add_u32 s45, s44, 4096")
    for fi in range(4):
        for j in range(8):
            o = fi * 2048 + j * 256
            a(f"buffer_load_dword v{KL+fi*8+j}, v6, s[20:23], s{44 + o//4096} offen offset:{o%4096}{SC}")
    for part in range(2):
        for j in range(8):
            o = (part * 2 + 1) * 2048 + j * 256
            a(f"buffer_load_dword v{KL+32+part*8+j}, v7, s[20:23], s{44 + o//4096} offen offset:{o%4096}{SC}")
    a("s_waitcnt vmcnt(0)")
    KC = 64
    for fi in range(6):
        for i in range(4):
            a(f"v_cvt_pk_bf16_f32 v{KC+fi*4+i}, v{KL+fi*8+2*i}, v{KL+fi*8+2*i+1}")
    NUM, DEN, OF = 96, 104, 108
    for part in range(2):
        pf = f"v[{OQ+4*part}:{OQ+4*part+3}]"
        for t in range(2):
            kf = KC + (part * 2 + t) * 4
            c = "0" if part == 0 else f"v[{NUM+4*t}:{NUM+4*t+3}]"
            a(f"v_mfma_f32_16x16x32_bf16 v[{NUM+4*t}:{NUM+4*t+3}], v[{kf}:{kf+3}], {pf}, {c}")
        c = "0" if part == 0 else f"v[{DEN}:{DEN+3}]"
        a(f"v_mfma_f32_16x16x32_bf16 v[{DEN}:{DEN+3}], v[{KC+16+4*part}:{KC+16+4*part+3}], {pf}, {c}")
    bf16_round(a, DEN)
    a(f"v_add_f32 v{DEN}, {f2u(1e-6):#x}, v{DEN}")
    bf16_round(a, DEN)
    a(f"v_rcp_f32 v{DEN}, v{DEN}")
    round8(a, NUM)
    for k in range(8): a(f"v_mul_f32 v{NUM+k}, v{NUM+k}, v{DEN}")
    pack8(a, NUM, OF)
    srd(a, 16, WS, OB[layer], XBYTES)
    a("v_add_u32 v6, s47, v3")
    a("v_mul_u32_u24 v6, 896, v6")
    a("v_lshl_add_u32 v6, v4, 3, v6")
    a("v_mov_b32 v8, 0x40000000")
    a(f"v_cndmask_b32 v7, v6, v8, {G3}")
    a(f"s_mul_i32 s44, s{C16}, 56")
    a(f"buffer_store_dwordx2 v[{OF}:{OF+1}], v6, s[16:19], s44 offen{SC}")
    a(f"buffer_store_dwordx2 v[{OF+2}:{OF+3}], v7, s[16:19], s44 offen offset:32{SC}")
    a(f"s_lshl_b32 s40, s{RB16}, 4"); a(f"s_add_u32 s40, s40, s{C16}"); a(f"s_add_u32 s40, s40, {fl+F_O}")
    signal(a, 40)
    stamp(a, "o signalled")

def half_exchange(a, ACC, RED, T):
    lo = a.newlabel("hx_lo"); j1 = a.newlabel("hx_j1")
    a(f"s_lshl_b32 s44, s{TT}, 1"); a(f"s_add_u32 s44, s44, s{KH}"); a("s_lshl_b32 s45, s44, 11")
    a("s_xor_b32 s44, s44, 1"); a("s_lshl_b32 s44, s44, 11")
    a(f"s_add_u32 s45, s45, {RED}"); a(f"s_add_u32 s44, s44, {RED}")
    a(f"v_add_u32 v6, s45, v2")
    a(f"v_add_u32 v7, s44, v2")
    a(f"s_cmp_eq_u32 s{KH}, 0"); a(f"s_cbranch_scc1 {lo}")
    a(f"ds_write_b128 v6, v[{ACC}:{ACC+3}]")
    a(f"ds_write_b128 v6, v[{ACC+4}:{ACC+7}] offset:1024")
    for i in range(8): a(f"v_mov_b32 v{T+i}, v{ACC+8+i}")
    a(f"s_branch {j1}")
    a.label(lo)
    a(f"ds_write_b128 v6, v[{ACC+8}:{ACC+11}]")
    a(f"ds_write_b128 v6, v[{ACC+12}:{ACC+15}] offset:1024")
    for i in range(8): a(f"v_mov_b32 v{T+i}, v{ACC+i}")
    a.label(j1)
    a("s_waitcnt lgkmcnt(0)")
    a("s_barrier")
    a(f"ds_read_b128 v[{ACC}:{ACC+3}], v7")
    a(f"ds_read_b128 v[{ACC+4}:{ACC+7}], v7 offset:1024")
    a("s_waitcnt lgkmcnt(0)")
    for i in range(8): a(f"v_add_f32 v{T+i}, v{T+i}, v{ACC+i}")

def tile_voff(a, v):
    a(f"s_lshl_b32 s44, s{RB7}, 6"); a(f"s_lshl_b32 s45, s{TT}, 4"); a("s_add_u32 s44, s44, s45")
    a(f"v_add_u32 v{v}, s44, v3")
    a(f"v_mul_u32_u24 v{v}, 896, v{v}")
    a(f"v_lshl_add_u32 v{v}, v4, 4, v{v}")
    a(f"s_lshl_b32 s44, s{CB7}, 7"); a(f"s_lshl_b32 s45, s{KH}, 6"); a("s_add_u32 s44, s44, s45")
    a(f"v_add_u32 v{v}, s44, v{v}")

def arow_voff(a, v, pitch, khbytes):
    a(f"s_lshl_b32 s44, s{RB7}, 6"); a(f"s_lshl_b32 s45, s{TT}, 4"); a("s_add_u32 s44, s44, s45")
    a(f"v_add_u32 v{v}, s44, v3")
    a(f"v_mul_u32_u24 v{v}, {pitch}, v{v}")
    a(f"v_lshl_add_u32 v{v}, v4, 4, v{v}")
    a(f"s_mul_i32 s44, s{KH}, {khbytes}")
    a(f"v_add_u32 v{v}, s44, v{v}")

def unpack_add(a, T, src):
    for i in range(4):
        a(f"v_lshlrev_b32 v8, 16, v{src+i}")
        a(f"v_and_b32 v9, 0xffff0000, v{src+i}")
        a(f"v_add_f32 v{T+2*i}, v{T+2*i}, v8")
        a(f"v_add_f32 v{T+2*i+1}, v{T+2*i+1}, v9")

def round8(a, T):
    for i in range(0, 8, 2):
        a(f"v_cvt_pk_bf16_f32 v{T+i+1}, v{T+i}, v{T+i+1}")
        a(f"v_lshlrev_b32 v{T+i}, 16, v{T+i+1}")
        a(f"v_and_b32 v{T+i+1}, 0xffff0000, v{T+i+1}")

def pack8(a, T, O):
    for i in range(4):
        a(f"v_cvt_pk_bf16_f32 v{O+i}, v{T+2*i}, v{T+2*i+1}")

def stat_exchange(a, s1, s2, ST, idx):
    a(f"s_lshl_b32 s44, s{KH}, 2"); a(f"s_add_u32 s44, s44, s{TT}"); a("s_lshl_b32 s45, s44, 7")
    a("s_xor_b32 s44, s44, 4"); a("s_lshl_b32 s44, s44, 7")
    a("v_lshl_add_u32 v6, v3, 3, s45")
    a("v_lshl_add_u32 v7, v3, 3, s44")
    a(f"ds_write_b64 v6, v[{s1}:{s2}] offset:{ST+idx*1024}")
    a("s_waitcnt lgkmcnt(0)")
    a("s_barrier")
    a(f"ds_read_b64 v[6:7], v7 offset:{ST+idx*1024}")
    a("s_waitcnt lgkmcnt(0)")
    a(f"v_add_f32 v{s1}, v{s1}, v6")
    a(f"v_add_f32 v{s2}, v{s2}, v7")

def splitk_gemm7(a, XAr, ACC, WB):
    a(f"s_mul_i32 s44, s{KH}, 7168")
    a(f"v_add_u32 v8, s44, v2")
    def rd(k, s):
        for nt in range(4):
            a(f"ds_read_b128 v[{WB[s]+4*nt}:{WB[s]+4*nt+3}], v8 offset:{(nt*14+k)*1024}")
    rd(0, 0)
    for k in range(7):
        s = k & 1
        if k < 6:
            rd(k + 1, 1 - s); a("s_waitcnt lgkmcnt(4)")
        else:
            a("s_waitcnt lgkmcnt(0)")
        for nt in range(4):
            c = "0" if k == 0 else f"v[{ACC+4*nt}:{ACC+4*nt+3}]"
            a(f"v_mfma_f32_16x16x32_bf16 v[{ACC+4*nt}:{ACC+4*nt+3}], v[{WB[s]+4*nt}:{WB[s]+4*nt+3}], v[{XAr+4*k}:{XAr+4*k+3}], {c}")

L_ST, L_RED = 57344, 59392

def sig_rb7(a, arr):
    a(f"s_lshl_b32 s40, s{RB7}, 3"); a(f"s_add_u32 s40, s40, s{CB7}"); a(f"s_add_u32 s40, s40, {arr}")
    signal(a, 40)

def k2b(a, layer):
    fl = layer * F_LAYER
    a(f"s_lshr_b32 s40, s{RB7}, 1"); a("s_lshl_b32 s40, s40, 4"); a(f"s_add_u32 s40, s40, {fl+F_O}")
    wait_flags(a, 40, ('n', 16))
    stamp(a, "k2b start")
    srd(a, 8, WS, OB[layer], XBYTES)
    if layer == 0: srd(a, 16, AX, 0, XBYTES)
    else: srd(a, 16, WS, XB0, XBYTES)
    srd(a, 20, WS, XA[layer], XBYTES)
    XAr = 16
    arow_voff(a, 12, 896, 448)
    for k in range(7):
        a(f"buffer_load_dwordx4 v[{XAr+4*k}:{XAr+4*k+3}], v12, s[8:11], 0 offen offset:{k*64}{SC}")
    XT = 60
    tile_voff(a, 12)
    a(f"buffer_load_dwordx4 v[{XT}:{XT+3}], v12, s[16:19], 0 offen{SC}")
    a("s_waitcnt vmcnt(0)")
    a("s_barrier")
    stamp(a, "loaded")
    ACC = 64
    splitk_gemm7(a, XAr, ACC, [80, 96])
    T = 16
    half_exchange(a, ACC, L_RED, T)
    round8(a, T)
    unpack_add(a, T, XT)
    pack8(a, T, 24)
    a(f"buffer_store_dwordx4 v[24:27], v12, s[20:23], 0 offen{SC}")
    sig_rb7(a, fl + F_XA)
    stamp(a, "k2b done")

def k3(a, layer):
    fl = layer * F_LAYER
    a(f"s_lshl_b32 s40, s{RB7}, 3"); a(f"s_add_u32 s40, s40, {fl+F_XA}")
    wait_flags(a, 40, ('n', 7))
    stamp(a, "k3 start")
    srd(a, 8, WS, XA[layer], XBYTES)
    srd(a, 16, WS, XN[layer], XBYTES)
    srd(a, 20, WS, HB[layer], XBYTES)
    XAr = 16
    arow_voff(a, 12, 896, 448)
    for k in range(7):
        a(f"buffer_load_dwordx4 v[{XAr+4*k}:{XAr+4*k+3}], v12, s[8:11], 0 offen offset:{k*64}{SC}")
    a("s_waitcnt vmcnt(0)")
    stamp(a, "loaded")
    ln_stats(a, XAr, 28, 8, 9, 10, 11)
    stat_exchange(a, 8, 9, L_ST, 0)
    ln_finish(a, XAr, 28, 8, 9, 72)
    a(f"s_mul_i32 s47, s{KH}, 7")
    for k in range(7):
        sk = a.newlabel("k3sk")
        a(f"s_add_u32 s44, s47, {k}"); a("s_lshr_b32 s44, s44, 1"); a(f"s_cmp_lg_u32 s44, s{CB7}"); a(f"s_cbranch_scc1 {sk}")
        a(f"buffer_store_dwordx4 v[{XAr+4*k}:{XAr+4*k+3}], v12, s[16:19], 0 offen offset:{k*64}{SC}")
        a.label(sk)
    ln_stats(a, XAr, 28, 8, 9, 10, 11)
    stat_exchange(a, 8, 9, L_ST, 1)
    ln_finish(a, XAr, 28, 8, 9, 72)
    stamp(a, "ln2")
    ACC = 64
    splitk_gemm7(a, XAr, ACC, [80, 96])
    T = 16
    half_exchange(a, ACC, L_RED, T)
    gelu_pairs(a, list(range(T, T + 8)), 32)
    pack8(a, T, 24)
    tile_voff(a, 12)
    a(f"buffer_store_dwordx4 v[24:27], v12, s[20:23], 0 offen{SC}")
    sig_rb7(a, fl + F_H)
    stamp(a, "k3 done")

def k4(a, layer):
    fl = layer * F_LAYER
    a(f"s_lshl_b32 s40, s{RB7}, 3"); a(f"s_add_u32 s40, s40, {fl+F_H-8}")
    wait_flags(a, 40, ('rb3', RB7))
    stamp(a, "k4 start")
    srd(a, 8, WS, HB[layer], XBYTES)
    srd(a, 16, WS, XN[layer], XBYTES)
    srd(a, 20, WS, X1[layer], XBYTES)
    XAr = 16
    arow_voff(a, 12, 896, 448)
    a("v_subrev_u32 v13, 896, v12")
    a("v_add_u32 v14, 896, v12")
    a("v_subrev_u32 v15, 1792, v12")
    a("v_add_u32 v11, 1792, v12")
    GL = f"s[{M_GLT2}:{M_GLT2+1}]"
    hi = a.newlabel("k4hi"); jn = a.newlabel("k4jn")
    a(f"s_cmp_eq_u32 s{KH}, 1"); a(f"s_cbranch_scc1 {hi}")
    a(f"v_cndmask_b32 v10, v14, v13, {GL}")
    for k in range(7):
        base = 13 if k < 3 else (10 if k == 3 else 14)
        a(f"buffer_load_dwordx4 v[{XAr+4*k}:{XAr+4*k+3}], v{base}, s[8:11], 0 offen offset:{k*64}{SC}")
    a(f"s_branch {jn}")
    a.label(hi)
    a(f"v_cndmask_b32 v10, v11, v15, {GL}")
    for k in range(7):
        base = 15 if k < 3 else (10 if k == 3 else 11)
        a(f"buffer_load_dwordx4 v[{XAr+4*k}:{XAr+4*k+3}], v{base}, s[8:11], 0 offen offset:{k*64}{SC}")
    a.label(jn)
    XT = 60
    tile_voff(a, 12)
    a(f"buffer_load_dwordx4 v[{XT}:{XT+3}], v12, s[16:19], 0 offen{SC}")
    a("s_waitcnt vmcnt(0)")
    a("s_barrier")
    stamp(a, "loaded")
    ACC = 64
    splitk_gemm7(a, XAr, ACC, [80, 96])
    T = 16
    half_exchange(a, ACC, L_RED, T)
    round8(a, T)
    unpack_add(a, T, XT)
    pack8(a, T, 24)
    a(f"buffer_store_dwordx4 v[24:27], v12, s[20:23], 0 offen{SC}")
    sig_rb7(a, fl + F_X1)
    stamp(a, "k4 done")

def k5(a, layer):
    fl = layer * F_LAYER
    a(f"s_lshl_b32 s40, s{RB16}, 4"); a(f"s_add_u32 s40, s40, {fl+F_X1}")
    wait_flags(a, 40, ('rows', 2))
    stamp(a, "k5 start")
    srd(a, 8, WS, X1[layer], XBYTES)
    srd(a, 20, WS, H2[layer], S * F * 2)
    XAr = 16
    a(f"s_lshl_b32 s44, s{RB16}, 7"); a("s_lshl_b32 s45, s3, 4"); a("s_add_u32 s47, s44, s45")
    a("v_add_u32 v6, s47, v3")
    a("v_mul_u32_u24 v6, 896, v6")
    a("v_lshl_add_u32 v6, v4, 4, v6")
    for ks in range(14):
        a(f"buffer_load_dwordx4 v[{XAr+4*ks}:{XAr+4*ks+3}], v6, s[8:11], 0 offen offset:{ks*64}{SC}")
    a("s_waitcnt vmcnt(0)")
    stamp(a, "loaded")
    ln_stats(a, XAr, 56, 8, 9, 10, 11)
    ln_finish(a, XAr, 56, 8, 9, 72)
    a("s_barrier")
    stamp(a, "ln")
    WB = [84, 112]; ACC = 140
    def rd(ks, s):
        for nt in range(7):
            ad, o = lds_frag(nt * 14 + ks)
            a(f"ds_read_b128 v[{WB[s]+4*nt}:{WB[s]+4*nt+3}], {ad} offset:{o}")
    rd(0, 0)
    for ks in range(14):
        s = ks & 1
        if ks < 13:
            rd(ks + 1, 1 - s); a("s_waitcnt lgkmcnt(7)")
        else:
            a("s_waitcnt lgkmcnt(0)")
        for nt in range(7):
            c = "0" if ks == 0 else f"v[{ACC+4*nt}:{ACC+4*nt+3}]"
            a(f"v_mfma_f32_16x16x32_bf16 v[{ACC+4*nt}:{ACC+4*nt+3}], v[{WB[s]+4*nt}:{WB[s]+4*nt+3}], v[{XAr+4*ks}:{XAr+4*ks+3}], {c}")
    stamp(a, "mfma")
    gelu_pairs(a, list(range(ACC, ACC + 28)), 32)
    for i in range(14):
        a(f"v_cvt_pk_bf16_f32 v{16+i}, v{ACC+2*i}, v{ACC+2*i+1}")
    a("v_add_u32 v6, s47, v3")
    a("v_mul_u32_u24 v6, 3584, v6")
    a("v_lshl_add_u32 v7, v4, 3, v6")
    a("v_lshl_add_u32 v6, v4, 4, v6")
    a(f"s_mul_i32 s44, s{C16}, 224")
    for p in range(3):
        a(f"buffer_store_dwordx4 v[{16+4*p}:{19+4*p}], v6, s[20:23], s44 offen offset:{p*64}{SC}")
    a(f"buffer_store_dwordx2 v[28:29], v7, s[20:23], s44 offen offset:192{SC}")
    a(f"s_lshl_b32 s40, s{RB16}, 4"); a(f"s_add_u32 s40, s40, s{C16}"); a(f"s_add_u32 s40, s40, {fl+F_H2}")
    signal(a, 40)
    stamp(a, "k5 done")

def k6(a, layer):
    fl = layer * F_LAYER
    a(f"s_lshr_b32 s40, s{RB7}, 1"); a("s_lshl_b32 s40, s40, 4"); a(f"s_add_u32 s40, s40, {fl+F_H2}")
    wait_flags(a, 40, ('n', 16))
    stamp(a, "k6 start")
    LRED = 2 * SLOT
    srd(a, 8, WS, H2[layer], S * F * 2)
    srd(a, 16, WS, X1[layer], XBYTES)
    srd(a, 20, WS, XA[layer], XBYTES)
    if layer == 0: srd(a, 24, WS, XB0, XBYTES)
    else: srd(a, 24, OUT, 0, XBYTES)
    k6_setup(a)
    XAr = 16
    arow_voff(a, 6, 3584, 1792)
    for k in range(28):
        a(f"buffer_load_dwordx4 v[{XAr+4*k}:{XAr+4*k+3}], v6, s[8:11], 0 offen offset:{k*64}{SC}")
    XT1, XT2 = 176, 180
    tile_voff(a, 12)
    a(f"buffer_load_dwordx4 v[{XT1}:{XT1+3}], v12, s[16:19], 0 offen{SC}")
    a(f"buffer_load_dwordx4 v[{XT2}:{XT2+3}], v12, s[20:23], 0 offen{SC}")
    ACC = 128; WB = [144, 160]
    a(f"s_mul_i32 s44, s{KH}, 7168")
    a("v_add_u32 v8, s44, v2")
    a(f"v_add_u32 v9, {SLOT}, v8")
    for c in range(4):
        if c == 0: a("s_waitcnt vmcnt(23)")
        elif c == 1: a("s_waitcnt vmcnt(23)")
        elif c == 2: a("s_waitcnt vmcnt(7)")
        else: a("s_waitcnt vmcnt(0)")
        a("s_barrier")
        vb = "v8" if (c & 1) == 0 else "v9"
        def rd(k, s):
            for nt in range(4):
                a(f"ds_read_b128 v[{WB[s]+4*nt}:{WB[s]+4*nt+3}], {vb} offset:{(nt*14+k)*1024}")
        rd(0, 0)
        for k in range(7):
            s = k & 1
            if k < 6:
                rd(k + 1, 1 - s); a("s_waitcnt lgkmcnt(4)")
            else:
                a("s_waitcnt lgkmcnt(0)")
            kk = c * 7 + k
            for nt in range(4):
                cc = "0" if kk == 0 else f"v[{ACC+4*nt}:{ACC+4*nt+3}]"
                a(f"v_mfma_f32_16x16x32_bf16 v[{ACC+4*nt}:{ACC+4*nt+3}], v[{WB[s]+4*nt}:{WB[s]+4*nt+3}], v[{XAr+4*kk}:{XAr+4*kk+3}], {cc}")
        if c < 2:
            a("s_barrier")
            k6_chunk(a, c + 2)
    stamp(a, "mfma")
    T = 16
    half_exchange(a, ACC, LRED, T)
    round8(a, T)
    unpack_add(a, T, XT1)
    round8(a, T)
    unpack_add(a, T, XT2)
    pack8(a, T, 24)
    a(f"buffer_store_dwordx4 v[24:27], v12, s[24:27], 0 offen{SC if layer == 0 else ''}")
    if layer == 0:
        sig_rb7(a, fl + F_XB)
    stamp(a, "k6 done")

def build():
    stamp_idx[0] = 0; STAMP_NAMES.clear()
    a = Asm()
    done = "L_done"
    a("s_cmp_ge_u32 s2, 256"); a(f"s_cbranch_scc1 {done}")
    a(f"s_load_dwordx2 s[{AX}:{AX+1}], s[0:1], 0")
    a(f"s_load_dwordx2 s[{OUT}:{OUT+1}], s[0:1], 72")
    a(f"s_load_dwordx2 s[{DBG}:{DBG+1}], s[0:1], 80")
    a(f"s_load_dwordx2 s[{WS}:{WS+1}], s[0:1], 88")
    a("v_and_b32 v1, 63, v0")
    a("v_lshrrev_b32 v2, 6, v0")
    a("v_readfirstlane_b32 s3, v2")
    a("v_lshlrev_b32 v2, 4, v1")
    a("v_and_b32 v3, 15, v1")
    a("v_lshrrev_b32 v4, 4, v1")
    a("v_add_u32 v5, 0x10000, v2")
    a(f"v_cmp_eq_u32 s[{M_G3}:{M_G3+1}], 3, v4")
    a(f"v_cmp_le_u32 s[{M_M12GE}:{M_M12GE+1}], 12, v3")
    a(f"v_cmp_eq_u32 s[{M_M12}:{M_M12+1}], 12, v3")
    a(f"v_cmp_gt_u32 s[{M_GLT2}:{M_GLT2+1}], 2, v4")
    a(f"s_mov_b32 s{ONES}, 0x3f803f80")
    a(f"s_mov_b32 s{L2E}, {f2u(LOG2E):#x}")
    a(f"s_mov_b32 s90, {f2u(0.044715):#x}")
    a(f"s_mov_b32 s91, {f2u(-2.0 * 0.7978845608028654 * LOG2E):#x}")
    a(f"s_mov_b32 s44, {magic(7)}")
    a("s_lshr_b32 s45, s2, 3")
    a(f"s_mul_hi_u32 s{RB7}, s45, s44")
    a(f"s_mul_i32 s{CB7}, s{RB7}, 7")
    a(f"s_sub_u32 s{CB7}, s45, s{CB7}")
    a("s_and_b32 s45, s2, 7"); a("s_lshl_b32 s45, s45, 2")
    a(f"s_add_u32 s{RB7}, s{RB7}, s45")
    a(f"s_and_b32 s{RB16}, s2, 7"); a(f"s_lshl_b32 s{RB16}, s{RB16}, 1")
    a("s_lshr_b32 s45, s2, 7"); a(f"s_add_u32 s{RB16}, s{RB16}, s45")
    a(f"s_lshr_b32 s{C16}, s2, 3"); a(f"s_and_b32 s{C16}, s{C16}, 15")
    a(f"s_and_b32 s{TT}, s3, 3"); a(f"s_lshr_b32 s{KH}, s3, 2")
    a("s_waitcnt lgkmcnt(0)")
    stamp(a, "begin")
    prep(a)
    stamp(a, "prep done")
    pre_k1(a)
    for layer in range(2):
        k1(a, layer)
        idle = a.newlabel("idle"); idle2 = a.newlabel("idle2"); j = a.newlabel("join")
        a("s_cmp_ge_u32 s2, 224"); a(f"s_cbranch_scc1 {idle}")
        k2b(a, layer)
        pre_w56(a, WP1)
        k3(a, layer)
        pre_w56(a, WP2)
        k4(a, layer)
        a.label(idle)
        pre_k5(a)
        k5(a, layer)
        a("s_cmp_ge_u32 s2, 224"); a(f"s_cbranch_scc1 {idle2}")
        pre_k6(a)
        k6(a, layer)
        a.label(idle2)
        if layer == 0:
            a("s_barrier")
            pre_k1(a)
    a.label(done)
    a("s_endpgm")
    body = fix_hazards(a.lines)
    hdr = open("cdna_kernels/" + NAME + ".s.ref").read().split("; Override launch")[0]
    kname = NAME + "_kernel"
    nv = 256 if STAMP else 184
    return hdr + f"""; @launch grid=(256,1,1) block=(512,1,1) lds=153600
.amdgcn_target "amdgcn-amd-amdhsa--gfx950"
.text
.globl {kname}
.p2align 8
.type {kname},@function
{kname}:
""" + "\n".join(body) + f"""
.section .rodata,"a"
.p2align 6
.amdhsa_kernel {kname}
  .amdhsa_next_free_vgpr {nv}
  .amdhsa_next_free_sgpr 102
  .amdhsa_accum_offset {nv}
  .amdhsa_group_segment_fixed_size 0
  .amdhsa_kernarg_size 96
  .amdhsa_user_sgpr_count 2
  .amdhsa_user_sgpr_kernarg_segment_ptr 1
  .amdhsa_system_sgpr_workgroup_id_x 1
.end_amdhsa_kernel
"""

if __name__ == "__main__":
    out = sys.argv[1]
    if len(sys.argv) > 2 and sys.argv[2] == "stamp":
        STAMP = True
    open(out, "w").write(build())
    if STAMP:
        open(out + ".names", "w").write("\n".join(STAMP_NAMES))
    print("ws used", WS_USED)
```

```python
import sys
from asmlib import *
import struct

NAME = "interleave_layers__linear_kernel_hedgehog__mixer_s_mlp__prompt"
S, D, F, H, DH = 2048, 448, 1792, 16, 28
XBYTES = S * D * 2
off = 0
def region(n):
    global off
    o = off; off += (n + 255) // 256 * 256; return o
HEADW = 86 * 1024
WPQKV = region(16 * HEADW)
WPO = region(28 * 14 * 1024)
WP1 = region(28 * 14 * 1024)
WP2 = region(28 * 14 * 1024)
WP3 = region(112 * 14 * 1024)
WP4 = region(28 * 56 * 1024)
XF0 = region(128 * 14 * 1024)
NFRAG = off // 1024
KVACC = [region(16 * 8192) for _ in range(2)]
FLG = region(16384)
ZERO_BYTES = 2 * 131072 + 16384
assert FLG == KVACC[0] + 262144
OB = [region(XBYTES) for _ in range(2)]
XA = [region(XBYTES) for _ in range(2)]
XN = [region(XBYTES) for _ in range(2)]
HB = [region(XBYTES) for _ in range(2)]
X1 = [region(XBYTES) for _ in range(2)]
H2 = [region(S * F * 2) for _ in range(2)]
XB0 = region(XBYTES)
PBAR = region(2048)
STAMPS = region(65536)
WS_USED = off
F_KV, F_O, F_XA, F_H, F_X1, F_H2, F_XB, F_HR, F_LAYER = 0, 256, 512, 768, 1024, 1280, 1536, 1792, 2048
MODE, VWG = 80, 81
FORCE_FALLBACK = False

LOG2E = 1.4426950408889634
def f2u(x): return struct.unpack("<I", struct.pack("<f", x))[0]

WS, AX, OUT, DBG = 94, 96, 98, 92
RB7, CB7, RB16, C16, TT, KH = 84, 85, 86, 87, 88, 89
RB5, C5 = 82, 83
M_G3, M_M12GE, M_M12, M_GLT2 = 52, 54, 56, 58
ONES, L2E = 60, 61
SC = " sc1"
SCA = ""
SCW = ""
SPIN_MAX = 1 << 16

STAMP = False
stamp_idx = [0]
def stamp(a, name=""):
    if not STAMP: return
    i = stamp_idx[0]; stamp_idx[0] += 1
    sk = a.newlabel("st")
    a("s_memtime s[74:75]")
    a("s_cmp_lg_u32 s2, 5"); a(f"s_cbranch_scc1 {sk}")
    a("s_waitcnt lgkmcnt(0)")
    srd(a, 76, WS, STAMPS, 65536)
    a("s_lshl_b32 s75, s3, 2")
    a("v_mov_b32 v250, s74"); a("v_mov_b32 v251, s75")
    a(f"buffer_store_dword v250, v251, s[76:79], 0 offen offset:{i*32}")
    a.label(sk)
    STAMP_NAMES.append(name)
STAMP_NAMES = []
def gstamp(a, slot):
    if not STAMP: return
    sk = a.newlabel("gst")
    a("s_cmp_lg_u32 s3, 0"); a(f"s_cbranch_scc1 {sk}")
    a("s_memrealtime s[74:75]")
    a("s_waitcnt lgkmcnt(0)")
    srd(a, 76, WS, STAMPS + 32768, 32768)
    a("s_lshl_b32 s75, s2, 2")
    a("v_mov_b32 v250, s74"); a("v_mov_b32 v251, s75")
    a(f"buffer_store_dword v250, v251, s[76:79], 0 offen offset:{slot*1024}")
    a.label(sk)

def srd(a, d, base, offset, size):
    if offset:
        a(f"s_add_u32 s{d}, s{base}, {offset}")
        a(f"s_addc_u32 s{d+1}, s{base+1}, 0")
    else:
        a(f"s_mov_b32 s{d}, s{base}")
        a(f"s_mov_b32 s{d+1}, s{base+1}")
    a(f"s_mov_b32 s{d+2}, {size}")
    a(f"s_mov_b32 s{d+3}, 0x00020000")

def srd_soff(a, d, base, offset, soff, size):
    a(f"s_add_u32 s{d}, s{base}, s{soff}")
    a(f"s_addc_u32 s{d+1}, s{base+1}, 0")
    if offset:
        a(f"s_add_u32 s{d}, s{d}, {offset}")
        a(f"s_addc_u32 s{d+1}, s{d+1}, 0")
    a(f"s_mov_b32 s{d+2}, {size}")
    a(f"s_mov_b32 s{d+3}, 0x00020000")

def lds_frag(idx):
    if idx < 64: return ("v2", idx * 1024)
    if idx < 128: return ("v5", (idx - 64) * 1024)
    assert idx < 160
    return ("v13", (idx - 128) * 1024)

def allred_groups(a, op, r, t):
    a(f"v_mov_b32 v{t}, v{r}")
    a(f"v_permlane32_swap_b32 v{r}, v{t}")
    a(f"{op} v{r}, v{r}, v{t}")
    a(f"v_mov_b32 v{t}, v{r}")
    a(f"v_permlane16_swap_b32 v{r}, v{t}")
    a(f"{op} v{r}, v{r}, v{t}")

def allred_row16(a, op, regs):
    for rot in (8, 4, 2, 1):
        for r in regs:
            a(f"{op}_dpp v{r}, v{r}, v{r} row_ror:{rot} row_mask:0xf bank_mask:0xf")

def bf16_round(a, r):
    a(f"v_cvt_pk_bf16_f32 v{r}, v{r}, v{r}")
    a(f"v_and_b32 v{r}, 0xffff0000, v{r}")

def ln_stats(a, xa, n, s1, s2, s1b, s2b):
    a(f"v_mov_b32 v{s1}, 0"); a(f"v_mov_b32 v{s2}, 0"); a(f"v_mov_b32 v{s1b}, 0"); a(f"v_mov_b32 v{s2b}, 0")
    for i in range(n):
        d1, d2 = (s1, s2) if i % 2 == 0 else (s1b, s2b)
        a(f"v_dot2_f32_bf16 v{d1}, v{xa+i}, s{ONES}, v{d1}")
        a(f"v_dot2_f32_bf16 v{d2}, v{xa+i}, v{xa+i}, v{d2}")
    a(f"v_add_f32 v{s1}, v{s1}, v{s1b}")
    a(f"v_add_f32 v{s2}, v{s2}, v{s2b}")
    allred_groups(a, "v_add_f32", s1, s1b)
    allred_groups(a, "v_add_f32", s2, s2b)

def ln_finish(a, xa, n, s1, s2, tp, ntp=4):
    R, M = tp, tp + 2
    a(f"v_mul_f32 v{s1}, {f2u(1.0/448):#x}, v{s1}")
    a(f"v_mul_f32 v{s2}, {f2u(1.0/448):#x}, v{s2}")
    a(f"v_fma_f32 v{s2}, -v{s1}, v{s1}, v{s2}")
    a(f"v_max_f32 v{s2}, 0, v{s2}")
    bf16_round(a, s1)
    bf16_round(a, s2)
    a(f"v_add_f32 v{s2}, {f2u(1e-5):#x}, v{s2}")
    bf16_round(a, s2)
    a(f"v_sqrt_f32 v{s2}, v{s2}")
    bf16_round(a, s2)
    a(f"v_rcp_f32 v{R}, v{s2}")
    a(f"v_mul_f32 v{M}, v{s1}, v{R}")
    a(f"v_sub_f32 v{M}, 0, v{M}")
    for i in range(n):
        t = tp + 4 + 2 * (i % ntp)
        a(f"v_lshlrev_b32 v{t}, 16, v{xa+i}")
        a(f"v_and_b32 v{t+1}, 0xffff0000, v{xa+i}")
        a(f"v_pk_fma_f32 v[{t}:{t+1}], v[{t}:{t+1}], v[{R}:{R+1}], v[{M}:{M+1}] op_sel_hi:[1,0,0]")
        a(f"v_cvt_pk_bf16_f32 v{xa+i}, v{t}, v{t+1}")

def gelu_pairs(a, regs, tmp):
    n = len(regs)
    for i in range(0, n, 2):
        r0, r1 = regs[i], regs[i + 1]
        a(f"v_cvt_pk_bf16_f32 v{r1}, v{r0}, v{r1}")
        a(f"v_lshlrev_b32 v{r0}, 16, v{r1}")
        a(f"v_and_b32 v{r1}, 0xffff0000, v{r1}")
    for base in range(0, n, 4):
        grp = regs[base:base + 4]
        for k, r in enumerate(grp): a(f"v_mul_f32 v{tmp+k}, v{r}, v{r}")
        for k, r in enumerate(grp): a(f"v_fma_f32 v{tmp+k}, v{tmp+k}, s90, 1.0")
        for k, r in enumerate(grp): a(f"v_mul_f32 v{tmp+k}, v{tmp+k}, v{r}")
        for k, r in enumerate(grp): a(f"v_mul_f32 v{tmp+k}, s91, v{tmp+k}")
        for k, r in enumerate(grp): a(f"v_exp_f32 v{tmp+k}, v{tmp+k}")
        for k, r in enumerate(grp): a(f"v_add_f32 v{tmp+k}, 1.0, v{tmp+k}")
        for k, r in enumerate(grp): a(f"v_rcp_f32 v{tmp+k}, v{tmp+k}")
        for k, r in enumerate(grp): a(f"v_mul_f32 v{r}, v{r}, v{tmp+k}")

def dma_frags(a, srdW, first_s, count, lds_base, tmp_s):
    a(f"s_lshl_b32 s{tmp_s}, s{first_s}, 10")
    a(f"s_add_u32 s{tmp_s+1}, s{tmp_s}, {lds_base & 0xffffffff}")
    i = 0
    while i < count:
        a(f"s_mov_b32 m0, s{tmp_s+1}")
        for k in range(min(4, count - i)):
            a(f"buffer_load_dwordx4 v2, s[{srdW}:{srdW+3}], s{tmp_s} offen offset:{k*1024}{SCW} lds")
        i += 4
        if i < count:
            a(f"s_add_u32 s{tmp_s}, s{tmp_s}, 4096")
            a(f"s_add_u32 s{tmp_s+1}, s{tmp_s+1}, 4096")

def flag_srd(a):
    srd(a, 28, WS, FLG, 16384)

def signal(a, idx_s, local=True, remote_too=None, pre=None, npre=0, prebar=False):
    sk = a.newlabel("sig"); fb = a.newlabel("sigfb"); jn = a.newlabel("sigj")
    a(f"s_waitcnt vmcnt(0)")
    a("s_barrier")
    a("s_cmp_lg_u32 s3, 0"); a(f"s_cbranch_scc1 {sk}")
    flag_srd(a)
    a(f"s_lshl_b32 s48, s{idx_s}, 2")
    a("v_mov_b32 v6, 1"); a("v_mov_b32 v7, s48")
    a("s_mov_b64 exec, 1")
    if local:
        a(f"s_cmp_lg_u32 s{MODE}, 0"); a(f"s_cbranch_scc1 {fb}")
        a(f"buffer_store_dword v6, v7, s[28:31], 0 offen")
        a(f"s_branch {jn}")
        a.label(fb)
        a("buffer_wbl2 sc1")
        a("s_waitcnt vmcnt(0)")
        a(f"buffer_store_dword v6, v7, s[28:31], 0 offen sc1")
        a.label(jn)
    else:
        a(f"buffer_store_dword v6, v7, s[28:31], 0 offen sc1")
    if remote_too is not None:
        nr = a.newlabel("signr")
        a(f"s_cmp_eq_u32 s{remote_too}, 0"); a(f"s_cbranch_scc1 {nr}")
        a(f"v_add_u32 v7, {(F_HR-F_H)*4}, v7")
        a(f"buffer_store_dword v6, v7, s[28:31], 0 offen sc1")
        a.label(nr)
    a("s_mov_b64 exec, -1")
    a.label(sk)
    if pre is not None: pre(a)

def wait_flags(a, base_s, mode):
    sk = a.newlabel("wsk"); lp = a.newlabel("wlp"); dn = a.newlabel("wdn")
    a("s_cmp_lg_u32 s3, 0"); a(f"s_cbranch_scc1 {sk}")
    flag_srd(a)
    a("s_mov_b32 s50, 0")
    if mode[0] == 'x4':
        a(f"s_lshl_b32 s48, s{base_s}, 2")
        a("v_add_u32 v6, s48, v2")
        a.label(lp)
        a(f"buffer_load_dwordx4 v[8:11], v6, s[28:31], 0 offen{SC}")
        a("s_waitcnt vmcnt(0)")
        a("v_min_u32 v8, v8, v9"); a("v_min_u32 v10, v10, v11"); a("v_min_u32 v8, v8, v10")
        a("v_cmp_ne_u32 vcc, 0, v8")
        a("s_cmp_eq_u64 vcc, -1"); a(f"s_cbranch_scc1 {dn}")
    else:
        a(f"v_add_u32 v6, s{base_s}, v1")
        if mode[0] == 'n':
            a(f"v_cmp_le_u32 s[48:49], {mode[1]}, v1")
        elif mode[0] == 'rows':
            a("v_and_b32 v7, 7, v1")
            a("v_cmp_eq_u32 s[48:49], 7, v7")
            a(f"v_cmp_le_u32 vcc, {mode[1]*8}, v1")
            a("s_or_b64 s[48:49], s[48:49], vcc")
        elif mode[0] == 'rb3':
            a("v_and_b32 v7, 7, v1")
            a("v_cmp_eq_u32 s[48:49], 7, v7")
            a("v_cmp_le_u32 vcc, 24, v1")
            a("s_or_b64 s[48:49], s[48:49], vcc")
            a("v_lshrrev_b32 v7, 3, v1")
            a(f"v_add_u32 v7, s{mode[1]}, v7")
            a("v_cmp_eq_u32 vcc, 0, v7")
            a("s_or_b64 s[48:49], s[48:49], vcc")
            a("v_cmp_lt_u32 vcc, 32, v7")
            a("s_or_b64 s[48:49], s[48:49], vcc")
            a(f"s_and_b32 s51, s{mode[1]}, 3")
            a("s_cmp_eq_u32 s51, 0"); a(f"s_cselect_b32 s45, {F_HR-F_H}, 0")
            a("s_cmp_eq_u32 s51, 3"); a(f"s_cselect_b32 s51, {F_HR-F_H}, 0")
            a("v_cmp_gt_u32 vcc, 8, v1"); a("v_mov_b32 v7, s45"); a("v_cndmask_b32 v7, 0, v7, vcc"); a("v_add_u32 v6, v6, v7")
            a("v_cmp_le_u32 vcc, 16, v1"); a("v_mov_b32 v7, s51"); a("v_cndmask_b32 v7, 0, v7, vcc"); a("v_add_u32 v6, v6, v7")
        a("v_lshlrev_b32 v6, 2, v6")
        a("v_cndmask_b32 v6, v6, 0, s[48:49]")
        a.label(lp)
        a(f"buffer_load_dword v8, v6, s[28:31], 0 offen{SC}")
        a("s_waitcnt vmcnt(0)")
        a("v_cmp_ne_u32 vcc, 0, v8")
        a("s_or_b64 vcc, vcc, s[48:49]")
        a("s_cmp_eq_u64 vcc, -1"); a(f"s_cbranch_scc1 {dn}")
    a("s_sleep 1")
    a("s_add_u32 s50, s50, 1")
    a(f"s_cmp_lt_u32 s50, {SPIN_MAX}"); a(f"s_cbranch_scc1 {lp}")
    a.label(dn)
    a(f"s_cmp_eq_u32 s{MODE}, 0"); a(f"s_cbranch_scc1 {sk}")
    a("buffer_inv sc1")
    a("s_waitcnt vmcnt(0)")
    a.label(sk)
    a("s_barrier")

def pre_k1(a):
    a(f"s_mul_i32 s42, s{C16}, {HEADW}")
    srd_soff(a, 12, WS, WPQKV, 42, HEADW)
    a("s_mul_i32 s43, s3, 11")
    skip = a.newlabel("k1skip")
    dma_frags(a, 12, 43, 9, 0, 44)
    a("s_cmp_eq_u32 s3, 7"); a(f"s_cbranch_scc1 {skip}")
    a("s_add_u32 s43, s43, 9")
    dma_frags(a, 12, 43, 2, 0, 44)
    a.label(skip)

def pre_w56(a, WP, base):
    a(f"s_mul_i32 s44, s{CB7}, 57344")
    srd_soff(a, 12, WS, WP, 44, 57344)
    a("s_mul_i32 s46, s3, 7")
    dma_frags(a, 12, 46, 7, base, 44)

def pre_k5a(a):
    a(f"s_mul_i32 s44, s{C5}, 114688")
    srd_soff(a, 12, WS, WP3, 44, 114688)
    sk = a.newlabel("k5a")
    a("s_mul_i32 s46, s3, 11"); a("s_cmp_eq_u32 s3, 7"); a("s_cselect_b32 s46, 75, s46")
    dma_frags(a, 12, 46, 9, 57344, 44)
    a("s_cmp_ge_u32 s3, 6"); a(f"s_cbranch_scc1 {sk}")
    a("s_add_u32 s46, s46, 9")
    dma_frags(a, 12, 46, 2, 57344, 44)
    a.label(sk)
def pre_k5b(a):
    sk = a.newlabel("k5b")
    a(f"s_mul_i32 s44, s{C5}, 114688")
    srd_soff(a, 12, WS, WP3, 44, 114688)
    a("s_mul_i32 s46, s3, 3"); a("s_min_u32 s47, s3, 4"); a("s_add_u32 s46, s46, s47"); a("s_add_u32 s46, s46, 84")
    dma_frags(a, 12, 46, 3, -84 * 1024, 44)
    a("s_cmp_ge_u32 s3, 4"); a(f"s_cbranch_scc1 {sk}")
    a("s_add_u32 s46, s46, 3")
    dma_frags(a, 12, 46, 1, -84 * 1024, 44)
    a.label(sk)

SLOT = 32768
def k6_setup(a):
    a(f"s_mul_i32 s44, s{CB7}, 229376")
    srd_soff(a, 12, WS, WP4, 44, 229376)
    a("s_lshr_b32 s44, s3, 1"); a("s_and_b32 s45, s3, 1")
    a("s_mul_i32 s46, s44, 56"); a("s_mul_i32 s47, s45, 28"); a("s_add_u32 s46, s46, s47"); a("s_lshl_b32 s46, s46, 10")
    a("s_lshl_b32 s47, s3, 12")
def k6_chunk(a, c):
    a(f"s_add_u32 s44, s46, {c*4096}")
    a(f"s_add_u32 s45, s47, {(c&3)*SLOT}")
    a("s_mov_b32 m0, s45")
    for k in range(4):
        a(f"buffer_load_dwordx4 v2, s[12:15], s44 offen offset:{k*1024}{SCW} lds")
def pre_k6(a):
    k6_setup(a)
    for c in range(4): k6_chunk(a, c)

b_o = 1376; b_1 = b_o + 392; b_2 = b_1 + 392; b_3 = b_2 + 392; b_4 = b_3 + 1568
b_x = b_4 + 1568
assert b_x + 1792 == NFRAG
w_phi0 = 14 * 96
def prep_part(a, part, nit, stride, start=0):
    a("s_load_dwordx4 s[4:7], s[0:1], 8")
    a("s_load_dwordx2 s[36:37], s[0:1], 24")
    a("s_load_dwordx4 s[40:43], s[0:1], 40")
    a("s_load_dwordx4 s[44:47], s[0:1], 56")
    srd(a, 8, WS, 0, NFRAG * 1024)
    a("v_lshrrev_b32 v6, 2, v3"); a("v_and_b32 v7, 3, v3")
    a("v_lshl_add_u32 v8, v6, 3, v7")
    a("v_mov_b32 v15, 0x40000000")
    a("s_waitcnt lgkmcnt(0)")
    for it in range(nit):
        R = 32 + it * 8
        DS = 76 + it
        a(f"s_add_u32 s50, s49, {start + stride*it}")
        if part == 1:
            a(f"s_cmp_ge_u32 s50, 1376"); a(f"s_cselect_b32 s62, {b_x-1376}, 0"); a("s_add_u32 s50, s50, s62")
        elif part == 2:
            a(f"s_add_u32 s50, s50, {b_o}"); a(f"s_cmp_ge_u32 s50, {b_3}"); a(f"s_cselect_b32 s50, {NFRAG}, s50")
        else:
            a(f"s_add_u32 s50, s50, {b_3}"); a(f"s_cmp_ge_u32 s50, {b_x}"); a(f"s_cselect_b32 s50, {NFRAG}, s50")
        a(f"s_mov_b32 s{32+it}, s50")
        std = a.newlabel("k0std"); perm = a.newlabel("k0perm"); nxt = a.newlabel("k0nxt")
        t_o, t_1, t_2, t_3, t_4, t_phi, t_x, colgen = [a.newlabel("k0t") for _ in range(8)]
        a(f"s_cmp_ge_u32 s50, {NFRAG}"); a(f"s_cbranch_scc1 {nxt}")
        a(f"s_cmp_ge_u32 s50, {b_x}"); a(f"s_cbranch_scc1 {t_x}")
        a(f"s_cmp_ge_u32 s50, {b_4}"); a(f"s_cbranch_scc1 {t_4}")
        a(f"s_cmp_ge_u32 s50, {b_3}"); a(f"s_cbranch_scc1 {t_3}")
        a(f"s_cmp_ge_u32 s50, {b_2}"); a(f"s_cbranch_scc1 {t_2}")
        a(f"s_cmp_ge_u32 s50, {b_1}"); a(f"s_cbranch_scc1 {t_1}")
        a(f"s_cmp_ge_u32 s50, {b_o}"); a(f"s_cbranch_scc1 {t_o}")
        a(f"s_cmp_ge_u32 s50, {w_phi0}"); a(f"s_cbranch_scc1 {t_phi}")
        a(f"s_mov_b32 s62, {magic(96)}")
        a("s_mul_hi_u32 s66, s50, s62")
        a("s_mul_i32 s64, s66, 96")
        a("s_sub_u32 s64, s50, s64")
        a("s_lshr_b32 s67, s64, 5")
        a("s_bfe_u32 s63, s64, 0x40001")
        a("s_and_b32 s68, s64, 1")
        a("s_lshl_b32 s65, s67, 1"); a("s_add_u32 s65, s65, s68"); a("s_mul_i32 s65, s65, 14"); a("s_add_u32 s65, s65, s66")
        a(f"s_mul_i32 s{DS}, s63, 86"); a(f"s_add_u32 s{DS}, s{DS}, s65")
        a("s_mul_i32 s67, s67, 448")
        a("s_mul_i32 s69, s63, 28")
        a("s_add_u32 s67, s67, s69")
        a("s_lshl_b32 s69, s68, 4")
        a("s_add_u32 s67, s67, s69")
        srd(a, 12, 4, 0, 448 * 1344 * 2)
        a("s_mov_b32 s70, 2688")
        a("s_mul_i32 s71, s66, 32*2688")
        a("v_add_u32 v10, s67, v3")
        a("v_lshlrev_b32 v10, 1, v10")
        a("v_mul_u32_u24 v11, 8*2688, v4")
        a("v_add_u32 v10, v10, v11")
        a("s_cmp_eq_u32 s68, 0"); a(f"s_cbranch_scc1 {std}")
        a(f"v_cndmask_b32 v10, v10, v15, s[{M_M12GE}:{M_M12GE+1}]")
        a(f"s_branch {std}")
        a.label(t_phi)
        a(f"s_sub_u32 s64, s50, {w_phi0}")
        a("s_lshr_b32 s63, s64, 1"); a("s_and_b32 s68, s64, 1")
        a(f"s_mul_i32 s{DS}, s63, 86"); a(f"s_add_u32 s{DS}, s{DS}, s68"); a(f"s_add_u32 s{DS}, s{DS}, 84")
        srd(a, 12, 6, 0, 16 * 784 * 2)
        a("s_mov_b32 s70, 56")
        a("s_mul_i32 s71, s63, 1568")
        a("s_lshl_b32 s69, s68, 4")
        a("v_add_u32 v10, s69, v3")
        a("v_lshlrev_b32 v10, 1, v10")
        a("v_mul_u32_u24 v11, 4*56, v4")
        a("v_add_u32 v10, v10, v11")
        a("s_cmp_eq_u32 s68, 0"); a(f"s_cbranch_scc1 {perm}")
        a(f"v_cndmask_b32 v10, v10, v15, s[{M_M12GE}:{M_M12GE+1}]")
        a(f"s_branch {perm}")
        for lab, b, ptr, KS, sz in ((t_o, b_o, 36, 14, 448*448*2), (t_1, b_1, 40, 14, 448*448*2), (t_2, b_2, 42, 14, 448*448*2), (t_4, b_4, 46, 56, 1792*448*2)):
            a.label(lab)
            a(f"s_sub_u32 s64, s50, {b}")
            a(f"s_mov_b32 s62, {magic(28)}")
            a("s_mul_hi_u32 s66, s64, s62")
            a("s_mul_i32 s65, s66, 28")
            a("s_sub_u32 s65, s64, s65")
            a(f"s_mul_i32 s{DS}, s65, {KS}"); a(f"s_add_u32 s{DS}, s{DS}, s66"); a(f"s_add_u32 s{DS}, s{DS}, {b}")
            srd(a, 12, ptr, 0, sz)
            a(f"s_branch {colgen}")
        a.label(colgen)
        a("s_mov_b32 s70, 896")
        a("s_mul_i32 s71, s66, 32*896")
        a("s_lshr_b32 s67, s65, 1"); a("s_lshl_b32 s67, s67, 5")
        a("s_and_b32 s68, s65, 1"); a("s_lshl_b32 s68, s68, 2")
        a("s_add_u32 s67, s67, s68")
        a("v_add_u32 v10, s67, v8")
        a("v_lshlrev_b32 v10, 1, v10")
        a("v_mul_u32_u24 v11, 8*896, v4")
        a("v_add_u32 v10, v10, v11")
        a(f"s_branch {std}")
        a.label(t_x)
        a(f"s_mov_b32 s{DS}, s50")
        a(f"s_sub_u32 s64, s50, {b_x}")
        a(f"s_mov_b32 s62, {magic(14)}")
        a("s_mul_hi_u32 s65, s64, s62")
        a("s_mul_i32 s66, s65, 14")
        a("s_sub_u32 s66, s64, s66")
        srd(a, 12, AX, 0, XBYTES)
        a("s_mul_i32 s71, s65, 16*896"); a("s_lshl_b32 s66, s66, 6"); a("s_add_u32 s71, s71, s66")
        a("v_mul_u32_u24 v10, 896, v3")
        a("v_lshl_add_u32 v10, v4, 4, v10")
        a(f"buffer_load_dwordx4 v[{R}:{R+3}], v10, s[12:15], s71 offen")
        a(f"s_branch {nxt}")
        a.label(t_3)
        a(f"s_sub_u32 s64, s50, {b_3}")
        a(f"s_mov_b32 s62, {magic(112)}")
        a("s_mul_hi_u32 s66, s64, s62")
        a("s_mul_i32 s65, s66, 112")
        a("s_sub_u32 s65, s64, s65")
        a(f"s_mul_i32 s{DS}, s65, 14"); a(f"s_add_u32 s{DS}, s{DS}, s66"); a(f"s_add_u32 s{DS}, s{DS}, {b_3}")
        srd(a, 12, 44, 0, 448 * 1792 * 2)
        a("s_mov_b32 s70, 3584")
        a("s_mul_i32 s71, s66, 32*3584")
        a("s_lshr_b32 s67, s65, 1"); a("s_lshl_b32 s67, s67, 5")
        a("s_and_b32 s68, s65, 1"); a("s_lshl_b32 s68, s68, 2")
        a("s_add_u32 s67, s67, s68")
        a("v_add_u32 v10, s67, v8")
        a("v_lshlrev_b32 v10, 1, v10")
        a("v_mul_u32_u24 v11, 8*3584, v4")
        a("v_add_u32 v10, v10, v11")
        a.label(std)
        for j in range(8):
            a(f"buffer_load_ushort v{R + j}, v10, s[12:15], s71 offen")
            if j < 7: a("s_add_u32 s71, s71, s70")
        a(f"s_branch {nxt}")
        a.label(perm)
        a(f"v_cndmask_b32 v11, v10, v15, s[{M_G3}:{M_G3+1}]")
        a("s_mul_i32 s72, s70, 13")
        for j in range(8):
            vv = 10 if j < 4 else 11
            a(f"buffer_load_ushort v{R + j}, v{vv}, s[12:15], s71 offen")
            if j == 3: a("s_add_u32 s71, s71, s72")
            elif j < 7: a("s_add_u32 s71, s71, s70")
        a.label(nxt)
    a("s_waitcnt vmcnt(0)")
    for it in range(nit):
        R = 32 + it * 8; DS = 76 + it
        a(f"s_mov_b32 s50, s{32+it}")
        nx = a.newlabel("k0sx"); st = a.newlabel("k0st")
        a(f"s_cmp_ge_u32 s50, {NFRAG}"); a(f"s_cbranch_scc1 {nx}")
        a(f"s_cmp_ge_u32 s50, {b_x}"); a(f"s_cbranch_scc1 {st}")
        for i in range(4):
            a(f"v_lshl_or_b32 v{R+i}, v{R+2*i+1}, 16, v{R+2*i}")
        a.label(st)
        a(f"s_lshl_b32 s71, s{DS}, 10")
        a(f"buffer_store_dwordx4 v[{R}:{R+3}], v2, s[8:11], s71 offen{SC}")
        a.label(nx)


TOK = 100
def pb_poll(a, bits, keep=False):
    lp = a.newlabel("pblp"); dn = a.newlabel("pbdn")
    srd(a, 28, WS, PBAR, 2048)
    a("v_lshlrev_b32 v6, 5, v1")
    a("s_mov_b32 s50, 0")
    a(f"s_or_b32 s48, s{TOK+1}, {bits}")
    a(f"s_mov_b32 s49, {0xffffff00 | bits:#x}")
    a.label(lp)
    a(f"buffer_load_dwordx4 v[16:19], v6, s[28:31], 0 offen{SC}")
    a(f"buffer_load_dwordx4 v[20:23], v6, s[28:31], 0 offen offset:16{SC}")
    a("s_waitcnt vmcnt(0)")
    a(f"v_cmp_eq_u32 vcc, s{TOK}, v16")
    for k in range(1, 4):
        a(f"v_cmp_eq_u32 s[62:63], s{TOK}, v{16+2*k}"); a("s_and_b64 vcc, vcc, s[62:63]")
    for k in range(4):
        a(f"v_and_b32 v8, s49, v{17+2*k}")
        a(f"v_cmp_eq_u32 s[62:63], s48, v8"); a("s_and_b64 vcc, vcc, s[62:63]")
    a("s_cmp_eq_u64 vcc, -1"); a(f"s_cbranch_scc1 {dn}")
    a("s_sleep 1")
    a("s_add_u32 s50, s50, 1")
    a(f"s_cmp_lt_u32 s50, {SPIN_MAX}"); a(f"s_cbranch_scc1 {lp}")
    a.label(dn)
    if keep:
        for k in range(4): a(f"v_and_b32 v{10+k}, 15, v{17+2*k}")

def pb_store(a, bits):
    srd(a, 28, WS, PBAR, 2048)
    a("s_getreg_b32 s51, hwreg(HW_REG_XCC_ID, 0, 4)")
    a("s_and_b32 s51, s51, 7"); a("s_add_u32 s44, s51, 1")
    a(f"s_or_b32 s45, s44, s{TOK+1}"); a(f"s_or_b32 s45, s45, {bits}")
    a(f"v_mov_b32 v6, s{TOK}"); a("v_mov_b32 v7, s45"); a("s_lshl_b32 s45, s2, 3"); a("v_mov_b32 v8, s45")
    a("s_mov_b64 exec, 1")
    a(f"buffer_store_dwordx2 v[6:7], v8, s[28:31], 0 offen{SC}")
    a("s_mov_b64 exec, -1")

def prep(a):
    nt = a.newlabel("ntok")
    a("s_or_b32 s44, s2, s3"); a("s_cmp_lg_u32 s44, 0"); a(f"s_cbranch_scc1 {nt}")
    a("s_memrealtime s[44:45]")
    a("s_waitcnt lgkmcnt(0)")
    a("s_or_b32 s44, s44, 1"); a("s_lshl_b32 s45, s45, 8"); a("s_xor_b32 s45, s45, 0x5a3c9600")
    srd(a, 28, DBG, 0, 256)
    a("v_mov_b32 v6, s44"); a("v_mov_b32 v7, s45"); a("v_mov_b32 v8, 0")
    a("s_mov_b64 exec, 1")
    a(f"buffer_store_dwordx2 v[6:7], v8, s[28:31], 0 offen{SC}")
    a("s_mov_b64 exec, -1")
    a.label(nt)
    srd(a, 8, WS, KVACC[0], ZERO_BYTES)
    a("s_lshl_b32 s50, s2, 9")
    a("v_add_u32 v6, s50, v0")
    a("v_lshlrev_b32 v6, 2, v6")
    a("v_mov_b32 v7, 0")
    a(f"buffer_store_dword v7, v6, s[8:11], 0 offen{SC}")
    a("s_lshl_b32 s49, s2, 3"); a("s_add_u32 s49, s49, s3")
    prep_part(a, 1, 2, 2048)
    sk = a.newlabel("pbsk"); lp = a.newlabel("tklp"); dn = a.newlabel("tkdn")
    a("s_waitcnt vmcnt(0)")
    a("s_barrier")
    stamp(a, "prep stored"); gstamp(a, 1)
    a("s_cmp_lg_u32 s3, 0"); a(f"s_cbranch_scc1 {sk}")
    srd(a, 28, DBG, 0, 256)
    a("v_mov_b32 v6, 0"); a("s_mov_b32 s50, 0")
    a.label(lp)
    a(f"buffer_load_dwordx2 v[8:9], v6, s[28:31], 0 offen{SC}")
    a("s_waitcnt vmcnt(0)")
    a(f"v_readfirstlane_b32 s{TOK}, v8"); a(f"v_readfirstlane_b32 s{TOK+1}, v9")
    a(f"s_cmp_lg_u32 s{TOK}, 0"); a(f"s_cbranch_scc1 {dn}")
    a("s_sleep 1")
    a("s_add_u32 s50, s50, 1")
    a(f"s_cmp_lt_u32 s50, {SPIN_MAX}"); a(f"s_cbranch_scc1 {lp}")
    a.label(dn)
    pb_store(a, 0)
    pb_poll(a, 0, keep=True)
    a("s_lshr_b32 s45, s2, 2"); a("s_and_b32 s46, s2, 3")
    a("s_bfm_b64 s[62:63], s45, 0")
    a("s_mov_b32 s47, 0")
    for b in range(4):
        a(f"v_cmp_eq_u32 vcc, s44, v{10+b}")
        a("s_bcnt1_i32_b64 s64, vcc")
        a("s_and_b64 vcc, vcc, s[62:63]")
        a("s_bcnt1_i32_b64 s65, vcc")
        a(f"s_cmp_gt_u32 s46, {b}"); a("s_cselect_b32 s64, s64, 0")
        a(f"s_cmp_eq_u32 s46, {b}"); a("s_cselect_b32 s65, s65, 0")
        a("s_add_u32 s47, s47, s64"); a("s_add_u32 s47, s47, s65")
    a(f"s_mov_b32 s{MODE}, {1 if FORCE_FALLBACK else 0}")
    for c in range(1, 9):
        a("s_mov_b32 s66, 0")
        for b in range(4):
            a(f"v_cmp_eq_u32 vcc, {c}, v{10+b}")
            a("s_bcnt1_i32_b64 s64, vcc")
            a("s_add_u32 s66, s66, s64")
        a("s_cmp_lg_u32 s66, 32"); a(f"s_cselect_b32 s{MODE}, 1, s{MODE}")
    a("s_lshl_b32 s47, s47, 3"); a("s_add_u32 s47, s47, s51")
    a(f"s_cmp_lg_u32 s{MODE}, 0"); a("s_cselect_b32 s47, s2, s47")
    a("v_mov_b32 v8, s47"); a(f"v_mov_b32 v9, s{MODE}"); a("v_mov_b32 v6, 163832")
    a("ds_write_b64 v6, v[8:9]")
    a("s_waitcnt lgkmcnt(0)")
    a.label(sk)
    a("s_barrier")
    a("v_mov_b32 v6, 163832")
    a("ds_read_b64 v[8:9], v6")
    a("s_waitcnt lgkmcnt(0)")
    a(f"v_readfirstlane_b32 s{VWG}, v8")
    a(f"v_readfirstlane_b32 s{MODE}, v9")

def prep_flag(a, bits):
    sk = a.newlabel("pfsk")
    a("s_waitcnt vmcnt(0)")
    a("s_barrier")
    a("s_cmp_lg_u32 s3, 0"); a(f"s_cbranch_scc1 {sk}")
    pb_store(a, bits)
    a.label(sk)

def wait_prep2(a, bit):
    sk = a.newlabel("p2sk")
    a("s_cmp_lg_u32 s3, 0"); a(f"s_cbranch_scc1 {sk}")
    pb_poll(a, bit)
    a.label(sk)
    a("s_barrier")

def load_frags(a, dst, n, srdA, soff, vaddr="v2"):
    for k in range(n):
        if k and k % 4 == 0: a(f"s_add_u32 s{soff}, s{soff}, 4096")
        a(f"buffer_load_dwordx4 v[{dst+4*k}:{dst+4*k+3}], {vaddr}, s[{srdA}:{srdA+3}], s{soff} offen offset:{(k%4)*1024}{SCA}")

def k1(a, layer):
    fl = layer * F_LAYER
    if layer == 1:
        a(f"s_lshl_b32 s40, s{RB16}, 4"); a(f"s_add_u32 s40, s40, {F_XB}")
        wait_flags(a, 40, ('rows', 2))
    stamp(a, f"k1.{layer} start")
    srd(a, 8, WS, XF0 if layer == 0 else XB0, XBYTES)
    XAr = 16
    a(f"s_lshl_b32 s47, s{RB16}, 3"); a("s_add_u32 s47, s47, s3")
    a("s_mul_i32 s44, s47, 14336")
    load_frags(a, XAr, 14, 8, 44)
    a("s_waitcnt vmcnt(0)")
    stamp(a, "loaded")
    ln_stats(a, XAr, 56, 8, 9, 10, 11)
    ln_finish(a, XAr, 56, 8, 9, 72)
    a("s_barrier")
    stamp(a, "ln")
    WB = [80, 104]; ACC = 128
    def rd(ks, s):
        for mt in range(6):
            ad, o = lds_frag(mt * 14 + ks)
            a(f"ds_read_b128 v[{WB[s]+4*mt}:{WB[s]+4*mt+3}], {ad} offset:{o}")
    rd(0, 0)
    for ks in range(14):
        s = ks & 1
        if ks < 13:
            rd(ks + 1, 1 - s); a("s_waitcnt lgkmcnt(6)")
        else:
            a("s_waitcnt lgkmcnt(0)")
        xf = f"v[{XAr+4*ks}:{XAr+4*ks+3}]"
        for mt in range(6):
            wf = f"v[{WB[s]+4*mt}:{WB[s]+4*mt+3}]"
            acc = f"v[{ACC+4*mt}:{ACC+4*mt+3}]"
            c = "0" if ks == 0 else acc
            if mt < 4: a(f"v_mfma_f32_16x16x32_bf16 {acc}, {wf}, {xf}, {c}")
            else: a(f"v_mfma_f32_16x16x32_bf16 {acc}, {xf}, {wf}, {c}")
    PH = 80
    for u in range(2):
        ad, o = lds_frag(84 + u)
        a(f"ds_read_b128 v[{PH+4*u}:{PH+4*u+3}], {ad} offset:{o}")
    QF, KF = 88, 92
    for i in range(4):
        a(f"v_cvt_pk_bf16_f32 v{QF+i}, v{ACC+2*i}, v{ACC+2*i+1}")
        a(f"v_cvt_pk_bf16_f32 v{KF+i}, v{ACC+8+2*i}, v{ACC+8+2*i+1}")
    a("s_waitcnt lgkmcnt(0)")
    stamp(a, "mfma")
    PQ, PK = 96, 104
    for u in range(2):
        a(f"v_mfma_f32_16x16x32_bf16 v[{PQ+4*u}:{PQ+4*u+3}], v[{PH+4*u}:{PH+4*u+3}], v[{QF}:{QF+3}], 0")
    for u in range(2):
        a(f"v_mfma_f32_16x16x32_bf16 v[{PK+4*u}:{PK+4*u+3}], v[{KF}:{KF+3}], v[{PH+4*u}:{PH+4*u+3}], 0")
    VV = ACC + 16
    for r in range(4):
        a(f"v_cndmask_b32 v{VV+4+r}, v{VV+4+r}, 1.0, s[{M_M12}:{M_M12+1}]")
    VB = 112
    for t in range(2):
        a(f"v_cvt_pk_bf16_f32 v{VB+2*t}, v{VV+4*t}, v{VV+4*t+1}")
        a(f"v_cvt_pk_bf16_f32 v{VB+2*t+1}, v{VV+4*t+2}, v{VV+4*t+3}")
    for base in (PK, PQ):
        for i in range(0, 8, 2):
            a(f"v_cvt_pk_bf16_f32 v{base+i+1}, v{base+i}, v{base+i+1}")
            a(f"v_lshlrev_b32 v{base+i}, 16, v{base+i+1}")
            a(f"v_and_b32 v{base+i+1}, 0xffff0000, v{base+i+1}")
    G3 = f"s[{M_G3}:{M_G3+1}]"; MG = f"s[{M_M12GE}:{M_M12GE+1}]"
    KX, KN = 40, 44
    for r in range(4):
        a(f"v_max_f32 v{KX+r}, v{PK+r}, v{PK+4+r}")
        a(f"v_min_f32 v{KN+r}, v{PK+r}, v{PK+4+r}")
    for r in range(4):
        a(f"v_cndmask_b32 v{KX+r}, v{KX+r}, v{PK+r}, {MG}")
        a(f"v_cndmask_b32 v{KN+r}, v{KN+r}, v{PK+r}, {MG}")
    for rot in (8, 4, 2, 1):
        for r in range(4):
            a(f"v_max_f32_dpp v{KX+r}, v{KX+r}, v{KX+r} row_ror:{rot} row_mask:0xf bank_mask:0xf")
            a(f"v_min_f32_dpp v{KN+r}, v{KN+r}, v{KN+r} row_ror:{rot} row_mask:0xf bank_mask:0xf")
    for r in range(4):
        a(f"v_mul_f32 v{KX+r}, s{L2E}, v{KX+r}")
        a(f"v_mul_f32 v{KN+r}, s{L2E}, v{KN+r}")
    KP, KM = 48, 56
    for i in range(8):
        a(f"v_fma_f32 v{KP+i}, v{PK+i}, s{L2E}, -v{KX+(i&3)}")
        a(f"v_fma_f32 v{KM+i}, -v{PK+i}, s{L2E}, v{KN+(i&3)}")
    for i in range(8):
        a(f"v_exp_f32 v{KP+i}, v{KP+i}")
        a(f"v_exp_f32 v{KM+i}, v{KM+i}")
    for i in range(4, 8):
        a(f"v_cndmask_b32 v{KP+i}, v{KP+i}, 0, {MG}")
        a(f"v_cndmask_b32 v{KM+i}, v{KM+i}, 0, {MG}")
    for r in range(4):
        a(f"v_add_f32 v{KX+r}, v{KP+r}, v{KP+4+r}")
        a(f"v_add_f32 v{KN+r}, v{KM+r}, v{KM+4+r}")
    allred_row16(a, "v_add_f32", [KX + r for r in range(4)] + [KN + r for r in range(4)])
    for r in range(4):
        a(f"v_rcp_f32 v{KX+r}, v{KX+r}"); a(f"v_rcp_f32 v{KN+r}, v{KN+r}")
    for i in range(8):
        a(f"v_mul_f32 v{KP+i}, v{KP+i}, v{KX+(i&3)}")
        a(f"v_mul_f32 v{KM+i}, v{KM+i}, v{KN+(i&3)}")
    KA_ = 64
    for part, E in enumerate((KP, KM)):
        for u in range(2):
            d = KA_ + (part * 2 + u) * 2
            a(f"v_cvt_pk_bf16_f32 v{d}, v{E+4*u}, v{E+4*u+1}")
            a(f"v_cvt_pk_bf16_f32 v{d+1}, v{E+4*u+2}, v{E+4*u+3}")
    KV = 128
    for part in range(2):
        for t in range(2):
            for u in range(2):
                d = KV + (part * 2 + t) * 8 + u * 4
                af = KA_ + (part * 2 + u) * 2
                a(f"v_mfma_f32_16x16x16_bf16 v[{d}:{d+3}], v[{af}:{af+1}], v[{VB+2*t}:{VB+2*t+1}], 0")
    LRED = 88064
    a("v_lshlrev_b32 v6, 2, v1")
    a("s_lshl_b32 s44, s3, 13"); a(f"s_add_u32 s44, s44, {LRED}")
    a("v_add_u32 v7, s44, v6")
    for i in range(32):
        a(f"ds_write_b32 v7, v{KV+i} offset:{i*256}")
    a("s_waitcnt lgkmcnt(0)")
    a("s_barrier")
    a("s_lshl_b32 s44, s3, 10"); a(f"s_add_u32 s44, s44, {LRED}")
    a("v_add_u32 v7, s44, v6")
    RR = 128
    for i in range(4):
        for ww in range(8):
            a(f"ds_read_b32 v{RR+i*8+ww}, v7 offset:{ww*8192+i*256}")
    a("s_waitcnt lgkmcnt(0)")
    for i in range(4):
        b = RR + i * 8
        a(f"v_add_f32 v{b}, v{b}, v{b+1}"); a(f"v_add_f32 v{b+2}, v{b+2}, v{b+3}")
        a(f"v_add_f32 v{b+4}, v{b+4}, v{b+5}"); a(f"v_add_f32 v{b+6}, v{b+6}, v{b+7}")
        a(f"v_add_f32 v{b}, v{b}, v{b+2}"); a(f"v_add_f32 v{b+4}, v{b+4}, v{b+6}")
        a(f"v_add_f32 v{b}, v{b}, v{b+4}")
    srd(a, 20, WS, KVACC[layer], 131072)
    a(f"s_lshl_b32 s44, s{C16}, 13"); a("s_lshl_b32 s45, s3, 10"); a("s_add_u32 s44, s44, s45")
    for i in range(4):
        a(f"buffer_atomic_add_f32 v{RR+i*8}, v6, s[20:23], s44 offen offset:{i*256}{SC}")
    a(f"s_add_u32 s40, s2, {fl+F_KV}")
    signal(a, 40, local=False)
    stamp(a, "kv signalled")
    if layer == 0:
        a("s_mov_b32 s39, s47")
        a("s_lshl_b32 s49, s2, 3"); a("s_add_u32 s49, s49, s3")
        prep_part(a, 2, 1, 2048)
        a(f"s_cmp_ge_u32 s{VWG}, 224"); a("s_cselect_b32 s38, 0x10, 0x30")
        prep_flag(a, "s38")
        a("s_mov_b32 s47, s39")
        srd(a, 20, WS, KVACC[layer], 131072)
    if layer == 1:
        sk = a.newlabel("k1pre")
        a(f"s_cmp_ge_u32 s{VWG}, 224"); a(f"s_cbranch_scc1 {sk}")
        pre_w56(a, WPO, 0)
        a.label(sk)
    MX, MN, T0, T1 = 8, 9, 10, 11
    a(f"v_max3_f32 v{MX}, v{PQ}, v{PQ+1}, v{PQ+2}"); a(f"v_max_f32 v{MX}, v{MX}, v{PQ+3}")
    a(f"v_min3_f32 v{MN}, v{PQ}, v{PQ+1}, v{PQ+2}"); a(f"v_min_f32 v{MN}, v{MN}, v{PQ+3}")
    a(f"v_max3_f32 v{T0}, v{PQ+4}, v{PQ+5}, v{PQ+6}"); a(f"v_max3_f32 v{T0}, v{T0}, v{PQ+7}, v{MX}")
    a(f"v_min3_f32 v{T1}, v{PQ+4}, v{PQ+5}, v{PQ+6}"); a(f"v_min3_f32 v{T1}, v{T1}, v{PQ+7}, v{MN}")
    a(f"v_cndmask_b32 v{MX}, v{T0}, v{MX}, {G3}")
    a(f"v_cndmask_b32 v{MN}, v{T1}, v{MN}, {G3}")
    allred_groups(a, "v_max_f32", MX, T0)
    allred_groups(a, "v_min_f32", MN, T1)
    a(f"v_mul_f32 v{MX}, s{L2E}, v{MX}")
    a(f"v_mul_f32 v{MN}, s{L2E}, v{MN}")
    EP, EM = 16, 24
    for i in range(8):
        a(f"v_fma_f32 v{EP+i}, v{PQ+i}, s{L2E}, -v{MX}")
        a(f"v_fma_f32 v{EM+i}, -v{PQ+i}, s{L2E}, v{MN}")
    for i in range(8):
        a(f"v_exp_f32 v{EP+i}, v{EP+i}")
        a(f"v_exp_f32 v{EM+i}, v{EM+i}")
    for i in range(4, 8):
        a(f"v_cndmask_b32 v{EP+i}, v{EP+i}, 0, {G3}")
        a(f"v_cndmask_b32 v{EM+i}, v{EM+i}, 0, {G3}")
    for E, Sg in ((EP, MX), (EM, MN)):
        a(f"v_add_f32 v{Sg}, v{E}, v{E+1}")
        for i in range(2, 8): a(f"v_add_f32 v{Sg}, v{Sg}, v{E+i}")
    allred_groups(a, "v_add_f32", MX, T0)
    allred_groups(a, "v_add_f32", MN, T1)
    a(f"v_rcp_f32 v{MX}, v{MX}"); a(f"v_rcp_f32 v{MN}, v{MN}")
    for i in range(8):
        a(f"v_mul_f32 v{EP+i}, v{EP+i}, v{MX}")
        a(f"v_mul_f32 v{EM+i}, v{EM+i}, v{MN}")
    OQ = 176
    for i in range(4):
        a(f"v_cvt_pk_bf16_f32 v{OQ+i}, v{EP+2*i}, v{EP+2*i+1}")
        a(f"v_cvt_pk_bf16_f32 v{OQ+4+i}, v{EM+2*i}, v{EM+2*i+1}")
    a(f"s_mov_b32 s40, {fl+F_KV}")
    wait_flags(a, 40, ('x4',))
    stamp(a, "kv arrived")
    if layer == 0:
        wait_prep2(a, 0x10)
        sk = a.newlabel("k1pre")
        a(f"s_cmp_ge_u32 s{VWG}, 224"); a(f"s_cbranch_scc1 {sk}")
        pre_w56(a, WPO, 0)
        a.label(sk)
    KL = 16
    a("v_lshlrev_b32 v6, 2, v1")
    a("v_lshlrev_b32 v7, 6, v4"); a("v_add_u32 v7, 48, v7")
    a(f"s_lshl_b32 s44, s{C16}, 13"); a("s_add_u32 s45, s44, 4096")
    for fi in range(4):
        for j in range(8):
            o = fi * 2048 + j * 256
            a(f"buffer_load_dword v{KL+fi*8+j}, v6, s[20:23], s{44 + o//4096} offen offset:{o%4096}{SC}")
    for part in range(2):
        for j in range(8):
            o = (part * 2 + 1) * 2048 + j * 256
            a(f"buffer_load_dword v{KL+32+part*8+j}, v7, s[20:23], s{44 + o//4096} offen offset:{o%4096}{SC}")
    a("s_waitcnt vmcnt(0)")
    KC = 64
    for fi in range(6):
        for i in range(4):
            a(f"v_cvt_pk_bf16_f32 v{KC+fi*4+i}, v{KL+fi*8+2*i}, v{KL+fi*8+2*i+1}")
    NUM, DEN, OF = 96, 104, 108
    for part in range(2):
        pf = f"v[{OQ+4*part}:{OQ+4*part+3}]"
        for t in range(2):
            kf = KC + (part * 2 + t) * 4
            c = "0" if part == 0 else f"v[{NUM+4*t}:{NUM+4*t+3}]"
            a(f"v_mfma_f32_16x16x32_bf16 v[{NUM+4*t}:{NUM+4*t+3}], v[{kf}:{kf+3}], {pf}, {c}")
        c = "0" if part == 0 else f"v[{DEN}:{DEN+3}]"
        a(f"v_mfma_f32_16x16x32_bf16 v[{DEN}:{DEN+3}], v[{KC+16+4*part}:{KC+16+4*part+3}], {pf}, {c}")
    bf16_round(a, DEN)
    a(f"v_add_f32 v{DEN}, {f2u(1e-6):#x}, v{DEN}")
    bf16_round(a, DEN)
    a(f"v_rcp_f32 v{DEN}, v{DEN}")
    round8(a, NUM)
    for k in range(8): a(f"v_mul_f32 v{NUM+k}, v{NUM+k}, v{DEN}")
    pack8(a, NUM, OF)
    srd(a, 16, WS, OB[layer], XBYTES)
    a(f"s_mul_i32 s44, s{C16}, 28")
    a("v_lshl_add_u32 v8, v4, 2, s44")
    for t, vo in ((0, 6), (1, 7)):
        if t: a("v_add_u32 v8, 16, v8")
        a(f"v_lshrrev_b32 v9, 5, v8"); a(f"v_lshlrev_b32 v{vo}, 10, v9")
        a("v_bfe_u32 v9, v8, 3, 2"); a(f"v_lshl_add_u32 v{vo}, v9, 8, v{vo}")
        a(f"v_lshl_add_u32 v{vo}, v3, 4, v{vo}")
        a("v_and_b32 v9, 7, v8"); a(f"v_lshl_add_u32 v{vo}, v9, 1, v{vo}")
    a("v_mov_b32 v8, 0x40000000")
    a(f"v_cndmask_b32 v7, v7, v8, {G3}")
    a("s_mul_i32 s44, s47, 14336")
    a(f"buffer_store_dwordx2 v[{OF}:{OF+1}], v6, s[16:19], s44 offen{SCA}")
    a(f"buffer_store_dwordx2 v[{OF+2}:{OF+3}], v7, s[16:19], s44 offen{SCA}")
    a(f"s_lshl_b32 s40, s{RB16}, 4"); a(f"s_add_u32 s40, s40, s{C16}"); a(f"s_add_u32 s40, s40, {fl+F_O}")
    signal(a, 40)
    stamp(a, "o signalled")

def half_exchange(a, ACC, RED, T):
    lo = a.newlabel("hx_lo"); j1 = a.newlabel("hx_j1")
    a(f"s_lshl_b32 s44, s{TT}, 1"); a(f"s_add_u32 s44, s44, s{KH}"); a("s_lshl_b32 s45, s44, 11")
    a("s_xor_b32 s44, s44, 1"); a("s_lshl_b32 s44, s44, 11")
    a(f"s_add_u32 s45, s45, {RED}"); a(f"s_add_u32 s44, s44, {RED}")
    a(f"v_add_u32 v6, s45, v2")
    a(f"v_add_u32 v7, s44, v2")
    a(f"s_cmp_eq_u32 s{KH}, 0"); a(f"s_cbranch_scc1 {lo}")
    a(f"ds_write_b128 v6, v[{ACC}:{ACC+3}]")
    a(f"ds_write_b128 v6, v[{ACC+4}:{ACC+7}] offset:1024")
    for i in range(8): a(f"v_mov_b32 v{T+i}, v{ACC+8+i}")
    a(f"s_branch {j1}")
    a.label(lo)
    a(f"ds_write_b128 v6, v[{ACC+8}:{ACC+11}]")
    a(f"ds_write_b128 v6, v[{ACC+12}:{ACC+15}] offset:1024")
    for i in range(8): a(f"v_mov_b32 v{T+i}, v{ACC+i}")
    a.label(j1)
    a("s_waitcnt lgkmcnt(0)")
    a("s_barrier")
    a(f"ds_read_b128 v[{ACC}:{ACC+3}], v7")
    a(f"ds_read_b128 v[{ACC+4}:{ACC+7}], v7 offset:1024")
    a("s_waitcnt lgkmcnt(0)")
    for i in range(8): a(f"v_add_f32 v{T+i}, v{T+i}, v{ACC+i}")

def tile_soff(a, sd):
    a(f"s_lshl_b32 s{sd}, s{RB7}, 2"); a(f"s_add_u32 s{sd}, s{sd}, s{TT}"); a(f"s_mul_i32 s{sd}, s{sd}, 14")
    a(f"s_lshl_b32 s45, s{CB7}, 1"); a(f"s_add_u32 s{sd}, s{sd}, s45"); a(f"s_add_u32 s{sd}, s{sd}, s{KH}")
    a(f"s_lshl_b32 s{sd}, s{sd}, 10")

def arow_soff(a, sd, nks):
    a(f"s_lshl_b32 s{sd}, s{RB7}, 2"); a(f"s_add_u32 s{sd}, s{sd}, s{TT}"); a(f"s_mul_i32 s{sd}, s{sd}, {nks}")
    a(f"s_mul_i32 s45, s{KH}, {nks//2}"); a(f"s_add_u32 s{sd}, s{sd}, s45")
    a(f"s_lshl_b32 s{sd}, s{sd}, 10")

def unpack_add(a, T, src):
    for i in range(4):
        a(f"v_lshlrev_b32 v8, 16, v{src+i}")
        a(f"v_and_b32 v9, 0xffff0000, v{src+i}")
        a(f"v_add_f32 v{T+2*i}, v{T+2*i}, v8")
        a(f"v_add_f32 v{T+2*i+1}, v{T+2*i+1}, v9")

def round8(a, T):
    for i in range(0, 8, 2):
        a(f"v_cvt_pk_bf16_f32 v{T+i+1}, v{T+i}, v{T+i+1}")
        a(f"v_lshlrev_b32 v{T+i}, 16, v{T+i+1}")
        a(f"v_and_b32 v{T+i+1}, 0xffff0000, v{T+i+1}")

def pack8(a, T, O):
    for i in range(4):
        a(f"v_cvt_pk_bf16_f32 v{O+i}, v{T+2*i}, v{T+2*i+1}")

def stat_exchange(a, s1, s2, ST, idx):
    a(f"s_lshl_b32 s44, s{KH}, 2"); a(f"s_add_u32 s44, s44, s{TT}"); a("s_lshl_b32 s45, s44, 7")
    a("s_xor_b32 s44, s44, 4"); a("s_lshl_b32 s44, s44, 7")
    a(f"s_add_u32 s45, s45, {ST}"); a(f"s_add_u32 s44, s44, {ST}")
    ST = 0
    a("v_lshl_add_u32 v6, v3, 3, s45")
    a("v_lshl_add_u32 v7, v3, 3, s44")
    a(f"ds_write_b64 v6, v[{s1}:{s2}] offset:{ST+idx*1024}")
    a("s_waitcnt lgkmcnt(0)")
    a("s_barrier")
    a(f"ds_read_b64 v[6:7], v7 offset:{ST+idx*1024}")
    a("s_waitcnt lgkmcnt(0)")
    a(f"v_add_f32 v{s1}, v{s1}, v6")
    a(f"v_add_f32 v{s2}, v{s2}, v7")

def splitk_gemm7(a, XAr, ACC, WB, wbase):
    a(f"s_mul_i32 s44, s{KH}, 7168")
    if wbase: a(f"s_add_u32 s44, s44, {wbase}")
    a(f"v_add_u32 v8, s44, v2")
    def rd(k, s):
        for nt in range(4):
            a(f"ds_read_b128 v[{WB[s]+4*nt}:{WB[s]+4*nt+3}], v8 offset:{(nt*14+k)*1024}")
    rd(0, 0)
    for k in range(7):
        s = k & 1
        if k < 6:
            rd(k + 1, 1 - s); a("s_waitcnt lgkmcnt(4)")
        else:
            a("s_waitcnt lgkmcnt(0)")
        for nt in range(4):
            c = "0" if k == 0 else f"v[{ACC+4*nt}:{ACC+4*nt+3}]"
            a(f"v_mfma_f32_16x16x32_bf16 v[{ACC+4*nt}:{ACC+4*nt+3}], v[{WB[s]+4*nt}:{WB[s]+4*nt+3}], v[{XAr+4*k}:{XAr+4*k+3}], {c}")

L_ST, L_RED = 145408, 147456

def sig_rb7(a, arr, **kw):
    a(f"s_lshl_b32 s40, s{RB7}, 3"); a(f"s_add_u32 s40, s40, s{CB7}"); a(f"s_add_u32 s40, s40, {arr}")
    signal(a, 40, **kw)

def k2b(a, layer):
    fl = layer * F_LAYER
    a(f"s_lshr_b32 s40, s{RB7}, 1"); a("s_lshl_b32 s40, s40, 4"); a(f"s_add_u32 s40, s40, {fl+F_O}")
    wait_flags(a, 40, ('n', 16))
    stamp(a, "k2b start")
    srd(a, 8, WS, OB[layer], XBYTES)
    srd(a, 16, WS, XF0 if layer == 0 else XB0, XBYTES)
    srd(a, 20, WS, XA[layer], XBYTES)
    XAr = 16
    arow_soff(a, 44, 14)
    load_frags(a, XAr, 7, 8, 44)
    XT = 60
    tile_soff(a, 41)
    a(f"buffer_load_dwordx4 v[{XT}:{XT+3}], v2, s[16:19], s41 offen{SCA}")
    pre_w56(a, WP1, 57344)
    a("s_waitcnt vmcnt(7)")
    a("s_barrier")
    stamp(a, "loaded")
    ACC = 64
    splitk_gemm7(a, XAr, ACC, [80, 96], 0)
    T = 16
    half_exchange(a, ACC, L_RED, T)
    round8(a, T)
    unpack_add(a, T, XT)
    pack8(a, T, 24)
    a(f"buffer_store_dwordx4 v[24:27], v2, s[20:23], s41 offen{SCA}")
    sig_rb7(a, fl + F_XA)
    stamp(a, "k2b done")

def k3(a, layer):
    fl = layer * F_LAYER
    a(f"s_lshl_b32 s40, s{RB7}, 3"); a(f"s_add_u32 s40, s40, {fl+F_XA}")
    wait_flags(a, 40, ('n', 7))
    stamp(a, "k3 start")
    srd(a, 8, WS, XA[layer], XBYTES)
    srd(a, 16, WS, XN[layer], XBYTES)
    srd(a, 20, WS, HB[layer], XBYTES)
    XAr = 16
    arow_soff(a, 44, 14)
    a("s_mov_b32 s42, s44")
    load_frags(a, XAr, 7, 8, 44)
    pre_w56(a, WP2, 0)
    a("s_waitcnt vmcnt(7)")
    stamp(a, "loaded")
    ln_stats(a, XAr, 28, 8, 9, 10, 11)
    stat_exchange(a, 8, 9, L_ST, 0)
    ln_finish(a, XAr, 28, 8, 9, 72)
    a(f"s_mul_i32 s47, s{KH}, 7")
    for k in range(7):
        sk = a.newlabel("k3sk")
        a(f"s_add_u32 s44, s47, {k}"); a("s_lshr_b32 s44, s44, 1"); a(f"s_cmp_lg_u32 s44, s{CB7}"); a(f"s_cbranch_scc1 {sk}")
        a(f"s_add_u32 s44, s42, {k*1024}")
        a(f"buffer_store_dwordx4 v[{XAr+4*k}:{XAr+4*k+3}], v2, s[16:19], s44 offen{SCA}")
        a.label(sk)
    ln_stats(a, XAr, 28, 8, 9, 10, 11)
    stat_exchange(a, 8, 9, L_ST, 1)
    ln_finish(a, XAr, 28, 8, 9, 72)
    stamp(a, "ln2")
    ACC = 64
    splitk_gemm7(a, XAr, ACC, [80, 96], 57344)
    T = 16
    half_exchange(a, ACC, L_RED, T)
    gelu_pairs(a, list(range(T, T + 8)), 32)
    pack8(a, T, 24)
    tile_soff(a, 41)
    bs = a.newlabel("k3bs"); bj = a.newlabel("k3bj")
    a(f"s_and_b32 s42, s{RB7}, 3")
    a(f"s_cmp_eq_u32 s42, s{TT}"); a("s_cselect_b32 s43, 1, 0")
    a("s_add_u32 s44, s42, 1"); a("s_and_b32 s44, s44, 2")
    a("s_cmp_eq_u32 s44, 0"); a("s_cselect_b32 s42, 1, 0")
    a("s_and_b32 s43, s43, s42")
    a("s_cmp_lg_u32 s43, 0"); a(f"s_cbranch_scc1 {bs}")
    a(f"buffer_store_dwordx4 v[24:27], v2, s[20:23], s41 offen")
    a(f"s_branch {bj}")
    a.label(bs)
    a(f"buffer_store_dwordx4 v[24:27], v2, s[20:23], s41 offen sc1")
    a.label(bj)
    a(f"s_lshl_b32 s40, s{RB7}, 3"); a(f"s_add_u32 s40, s40, s{CB7}"); a(f"s_add_u32 s40, s40, {fl+F_H}")
    signal(a, 40, remote_too=42)
    stamp(a, "k3 done")

def k4(a, layer):
    fl = layer * F_LAYER
    if layer == 0: wait_prep2(a, 0x20)
    a(f"s_lshl_b32 s40, s{RB7}, 3"); a(f"s_add_u32 s40, s40, {fl+F_H-8}")
    wait_flags(a, 40, ('rb3', RB7))
    stamp(a, "k4 start")
    srd(a, 8, WS, HB[layer], XBYTES)
    srd(a, 16, WS, XN[layer], XBYTES)
    srd(a, 20, WS, X1[layer], XBYTES)
    XAr = 16
    a(f"s_lshl_b32 s44, s{RB7}, 6"); a(f"s_lshl_b32 s45, s{TT}, 4"); a("s_add_u32 s44, s44, s45")
    a("v_add_u32 v12, s44, v3")
    a("s_mov_b32 s45, 14336")
    for vo, sh in ((13, -1), (14, 1), (15, -2), (11, 2)):
        a(f"v_add_u32 v10, {sh}, v12")
        a("v_ashrrev_i32 v9, 4, v10")
        a(f"v_mul_lo_u32 v{vo}, v9, s45")
        a("v_and_b32 v10, 15, v10")
        a(f"v_lshl_add_u32 v{vo}, v10, 4, v{vo}")
        a(f"v_lshl_add_u32 v{vo}, v4, 8, v{vo}")
    GL = f"s[{M_GLT2}:{M_GLT2+1}]"
    hi = a.newlabel("k4hi"); jn = a.newlabel("k4jn")
    a(f"s_mul_i32 s44, s{KH}, 7168"); a("s_add_u32 s45, s44, 4096")
    a(f"s_cmp_eq_u32 s{KH}, 1"); a(f"s_cbranch_scc1 {hi}")
    a(f"v_cndmask_b32 v10, v14, v13, {GL}")
    for k in range(7):
        base = 13 if k < 3 else (10 if k == 3 else 14)
        a(f"buffer_load_dwordx4 v[{XAr+4*k}:{XAr+4*k+3}], v{base}, s[8:11], s{44+k//4} offen offset:{(k%4)*1024}{SCA}")
    a(f"s_branch {jn}")
    a.label(hi)
    a(f"v_cndmask_b32 v10, v11, v15, {GL}")
    for k in range(7):
        base = 15 if k < 3 else (10 if k == 3 else 11)
        a(f"buffer_load_dwordx4 v[{XAr+4*k}:{XAr+4*k+3}], v{base}, s[8:11], s{44+k//4} offen offset:{(k%4)*1024}{SCA}")
    a.label(jn)
    XT = 60
    tile_soff(a, 41)
    a(f"buffer_load_dwordx4 v[{XT}:{XT+3}], v2, s[16:19], s41 offen{SCA}")
    pre_k5a(a)
    a("s_waitcnt vmcnt(9)")
    a("s_barrier")
    stamp(a, "loaded")
    ACC = 64
    splitk_gemm7(a, XAr, ACC, [80, 96], 0)
    T = 16
    half_exchange(a, ACC, L_RED, T)
    round8(a, T)
    unpack_add(a, T, XT)
    pack8(a, T, 24)
    a(f"buffer_store_dwordx4 v[24:27], v2, s[20:23], s41 offen{SCA}")
    sig_rb7(a, fl + F_X1, pre=pre_k5b, npre=3)
    stamp(a, "k4 done")

def k5(a, layer):
    fl = layer * F_LAYER
    a(f"s_lshl_b32 s40, s{RB5}, 4"); a(f"s_add_u32 s40, s40, {fl+F_X1}")
    wait_flags(a, 40, ('rows', 2))
    stamp(a, "k5 start")
    srd(a, 8, WS, X1[layer], XBYTES)
    srd(a, 20, WS, H2[layer], S * F * 2)
    XAr = 16
    a(f"s_lshl_b32 s47, s{RB5}, 3"); a("s_add_u32 s47, s47, s3")
    a("s_mul_i32 s44, s47, 14336")
    load_frags(a, XAr, 14, 8, 44)
    a("s_waitcnt vmcnt(0)")
    stamp(a, "loaded")
    ln_stats(a, XAr, 56, 8, 9, 10, 11)
    ln_finish(a, XAr, 56, 8, 9, 72)
    a("s_barrier")
    stamp(a, "ln")
    a("v_add_u32 v13, 0x20000, v2")
    WB = [84, 116]; ACC = 148
    def rd(ks, s):
        for nt in range(8):
            ad, o = lds_frag(56 + nt * 14 + ks) if nt < 6 else lds_frag((nt - 6) * 14 + ks)
            a(f"ds_read_b128 v[{WB[s]+4*nt}:{WB[s]+4*nt+3}], {ad} offset:{o}")
    rd(0, 0)
    for ks in range(14):
        s = ks & 1
        if ks < 13:
            rd(ks + 1, 1 - s); a("s_waitcnt lgkmcnt(8)")
        else:
            a("s_waitcnt lgkmcnt(0)")
        for nt in range(8):
            c = "0" if ks == 0 else f"v[{ACC+4*nt}:{ACC+4*nt+3}]"
            a(f"v_mfma_f32_16x16x32_bf16 v[{ACC+4*nt}:{ACC+4*nt+3}], v[{WB[s]+4*nt}:{WB[s]+4*nt+3}], v[{XAr+4*ks}:{XAr+4*ks+3}], {c}")
    stamp(a, "mfma")
    gelu_pairs(a, list(range(ACC, ACC + 32)), 32)
    for i in range(16):
        a(f"v_cvt_pk_bf16_f32 v{16+i}, v{ACC+2*i}, v{ACC+2*i+1}")
    a("s_mul_i32 s44, s47, 56"); a(f"s_lshl_b32 s45, s{C5}, 2"); a("s_add_u32 s44, s44, s45"); a("s_lshl_b32 s44, s44, 10")
    for p in range(4):
        a(f"buffer_store_dwordx4 v[{16+4*p}:{19+4*p}], v2, s[20:23], s44 offen offset:{p*1024}{SCA}")
    a(f"s_lshl_b32 s40, s{RB5}, 4"); a(f"s_add_u32 s40, s40, s{C5}"); a(f"s_add_u32 s40, s40, {fl+F_H2}")
    signal(a, 40, pre=pre_k6, npre=16, prebar=True)
    stamp(a, "k5 done")

def k6(a, layer):
    fl = layer * F_LAYER
    a(f"s_lshr_b32 s40, s{RB7}, 1"); a("s_lshl_b32 s40, s40, 4"); a(f"s_add_u32 s40, s40, {fl+F_H2}")
    wait_flags(a, 40, ('n', 14))
    stamp(a, "k6 start")
    LRED = L_RED
    srd(a, 8, WS, H2[layer], S * F * 2)
    srd(a, 16, WS, X1[layer], XBYTES)
    srd(a, 20, WS, XA[layer], XBYTES)
    if layer == 0: srd(a, 24, WS, XB0, XBYTES)
    else: srd(a, 24, OUT, 0, XBYTES)
    k6_setup(a)
    XAr = 16
    arow_soff(a, 43, 56)
    def a_chunk(c):
        a(f"s_add_u32 s44, s43, {c*4096}")
        load_frags(a, XAr + 16 * c, 4, 8, 44)
    a_chunk(0); a_chunk(1)
    XT1, XT2 = 176, 180
    tile_soff(a, 41)
    a(f"buffer_load_dwordx4 v[{XT1}:{XT1+3}], v2, s[16:19], s41 offen{SCA}")
    a(f"buffer_load_dwordx4 v[{XT2}:{XT2+3}], v2, s[20:23], s41 offen{SCA}")
    if layer == 0: stamp(a, "k6 issued")
    ACC = 128; WB = [144, 160]
    a(f"s_lshl_b32 s44, s{KH}, 12")
    a("v_add_u32 v8, s44, v2")
    a(f"v_add_u32 v9, {2*SLOT}, v8")
    for c in range(7):
        if c + 2 <= 6: a_chunk(c + 2)
        seq = ["A0", "A1", "X"]
        for cc in range(c + 1):
            if cc + 2 <= 6: seq.append(f"A{cc+2}")
            if cc < c and cc < 3: seq.append(f"W{cc+4}")
        need = max(seq.index(f"A{c}"), seq.index(f"W{c}") if c >= 4 else -1)
        allowed = sum(2 if x == "X" else 4 for x in seq[need + 1:])
        a(f"s_waitcnt vmcnt({allowed})")
        a("s_barrier")
        if layer == 0: stamp(a, f"k6 c{c} ready")
        vb = "v8" if (c & 3) < 2 else "v9"
        so = (c & 1) * SLOT
        def rd(k, s):
            for nt in range(4):
                a(f"ds_read_b128 v[{WB[s]+4*nt}:{WB[s]+4*nt+3}], {vb} offset:{so+nt*8192+k*1024}")
        rd(0, 0)
        for k in range(4):
            s_ = k & 1
            if k < 3:
                rd(k + 1, 1 - s_); a("s_waitcnt lgkmcnt(4)")
            else:
                a("s_waitcnt lgkmcnt(0)")
            kk = c * 4 + k
            for nt in range(4):
                cc = "0" if kk == 0 else f"v[{ACC+4*nt}:{ACC+4*nt+3}]"
                a(f"v_mfma_f32_16x16x32_bf16 v[{ACC+4*nt}:{ACC+4*nt+3}], v[{WB[s_]+4*nt}:{WB[s_]+4*nt+3}], v[{XAr+4*kk}:{XAr+4*kk+3}], {cc}")
        if c < 3:
            a("s_barrier")
            k6_chunk(a, c + 4)
    stamp(a, "mfma")
    T = 16
    half_exchange(a, ACC, LRED, T)
    round8(a, T)
    unpack_add(a, T, XT1)
    round8(a, T)
    unpack_add(a, T, XT2)
    pack8(a, T, 24)
    if layer == 0:
        a(f"buffer_store_dwordx4 v[24:27], v2, s[24:27], s41 offen{SCA}")
        sig_rb7(a, fl + F_XB, pre=pre_k1, npre=9)
    else:
        a(f"s_lshl_b32 s44, s{RB7}, 6"); a(f"s_lshl_b32 s45, s{TT}, 4"); a("s_add_u32 s44, s44, s45")
        a("v_add_u32 v12, s44, v3")
        a("v_mul_u32_u24 v12, 896, v12")
        a("v_lshl_add_u32 v12, v4, 4, v12")
        a(f"s_lshl_b32 s44, s{CB7}, 7"); a(f"s_lshl_b32 s45, s{KH}, 6"); a("s_add_u32 s44, s44, s45")
        a("buffer_store_dwordx4 v[24:27], v12, s[24:27], s44 offen")
    stamp(a, "k6 done")

def l2_prefetch(a, first_frag, nfrag, widx_s, nw):
    lp = a.newlabel("pf"); dn = a.newlabel("pfd")
    srd(a, 12, WS, first_frag * 1024, nfrag * 1024)
    a(f"s_lshl_b32 s44, s{widx_s}, 12")
    a.label(lp)
    a(f"s_cmp_ge_u32 s44, {nfrag*1024}"); a(f"s_cbranch_scc1 {dn}")
    for rep in range(2):
        for k in range(4):
            a(f"buffer_load_dwordx4 v[{16+16*rep+4*k}:{19+16*rep+4*k}], v2, s[12:15], s44 offen offset:{k*1024}")
        a(f"s_add_u32 s44, s44, {nw*4096}")
    a("s_waitcnt vmcnt(4)")
    a(f"s_branch {lp}")
    a.label(dn)
    a("s_waitcnt vmcnt(0)")

def build():
    stamp_idx[0] = 0; STAMP_NAMES.clear()
    a = Asm()
    done = "L_done"
    a("s_cmp_ge_u32 s2, 256"); a(f"s_cbranch_scc1 {done}")
    a(f"s_load_dwordx2 s[{AX}:{AX+1}], s[0:1], 0")
    a(f"s_load_dwordx2 s[{OUT}:{OUT+1}], s[0:1], 72")
    a(f"s_load_dwordx2 s[{DBG}:{DBG+1}], s[0:1], 80")
    a(f"s_load_dwordx2 s[{WS}:{WS+1}], s[0:1], 88")
    a("v_and_b32 v1, 63, v0")
    a("v_lshrrev_b32 v2, 6, v0")
    a("v_readfirstlane_b32 s3, v2")
    a("v_lshlrev_b32 v2, 4, v1")
    a("v_and_b32 v3, 15, v1")
    a("v_lshrrev_b32 v4, 4, v1")
    a("v_add_u32 v5, 0x10000, v2")
    a(f"v_cmp_eq_u32 s[{M_G3}:{M_G3+1}], 3, v4")
    a(f"v_cmp_le_u32 s[{M_M12GE}:{M_M12GE+1}], 12, v3")
    a(f"v_cmp_eq_u32 s[{M_M12}:{M_M12+1}], 12, v3")
    a(f"v_cmp_gt_u32 s[{M_GLT2}:{M_GLT2+1}], 2, v4")
    a(f"s_mov_b32 s{ONES}, 0x3f803f80")
    a(f"s_mov_b32 s{L2E}, {f2u(LOG2E):#x}")
    a(f"s_mov_b32 s90, {f2u(0.044715):#x}")
    a(f"s_mov_b32 s91, {f2u(-2.0 * 0.7978845608028654 * LOG2E):#x}")
    a("s_waitcnt lgkmcnt(0)")
    stamp(a, "begin"); gstamp(a, 0)
    prep(a)
    stamp(a, "prep done"); gstamp(a, 2)
    a(f"s_mov_b32 s44, {magic(7)}")
    a(f"s_lshr_b32 s45, s{VWG}, 3")
    a(f"s_mul_hi_u32 s{RB7}, s45, s44")
    a(f"s_mul_i32 s{CB7}, s{RB7}, 7")
    a(f"s_sub_u32 s{CB7}, s45, s{CB7}")
    a(f"s_and_b32 s45, s{VWG}, 7"); a("s_lshl_b32 s45, s45, 2")
    a(f"s_add_u32 s{RB7}, s{RB7}, s45")
    a(f"s_and_b32 s{RB16}, s{VWG}, 7"); a(f"s_lshl_b32 s{RB16}, s{RB16}, 1")
    a(f"s_lshr_b32 s45, s{VWG}, 7"); a(f"s_add_u32 s{RB16}, s{RB16}, s45")
    a(f"s_lshr_b32 s{C16}, s{VWG}, 3"); a(f"s_and_b32 s{C16}, s{C16}, 15")
    a(f"s_and_b32 s{TT}, s3, 3"); a(f"s_lshr_b32 s{KH}, s3, 2")
    a(f"s_mov_b32 s44, {magic(14)}")
    a(f"s_lshr_b32 s45, s{VWG}, 3")
    a(f"s_mul_hi_u32 s{RB5}, s45, s44")
    a(f"s_mul_i32 s{C5}, s{RB5}, 14")
    a(f"s_sub_u32 s{C5}, s45, s{C5}")
    a(f"s_and_b32 s45, s{VWG}, 7"); a("s_lshl_b32 s45, s45, 1")
    a(f"s_add_u32 s{RB5}, s{RB5}, s45")
    pre_k1(a)
    for layer in range(2):
        k1(a, layer)
        idle = a.newlabel("idle"); idle2 = a.newlabel("idle2"); j = a.newlabel("join")
        a(f"s_cmp_ge_u32 s{VWG}, 224"); a(f"s_cbranch_scc1 {idle}")
        k2b(a, layer)
        k3(a, layer)
        k4(a, layer)
        k5(a, layer)
        k6(a, layer)
        if layer == 0:
            a(f"s_branch {j}")
            a.label(idle)
            a(f"s_sub_u32 s49, s{VWG}, 224"); a("s_lshl_b32 s49, s49, 3"); a("s_add_u32 s49, s49, s3")
            for rep in range(4):
                prep_part(a, 3, 4 if rep < 3 else 1, 256, rep * 1024)
            prep_flag(a, "0x30")
            wait_prep2(a, 0x20)
            a(f"s_sub_u32 s40, s{VWG}, 224"); a("s_lshr_b32 s40, s40, 3"); a("s_lshl_b32 s40, s40, 3"); a("s_add_u32 s40, s40, s3")
            l2_prefetch(a, WP3 // 1024, (XF0 - WP3) // 1024, 40, 32)
            l2_prefetch(a, 0, 1376, 40, 32)
            pre_k1(a)
            a.label(j)
        else:
            a(f"s_branch {done}")
            a.label(idle)
            a(f"s_sub_u32 s40, s{VWG}, 224"); a("s_lshr_b32 s40, s40, 3"); a("s_lshl_b32 s40, s40, 3"); a("s_add_u32 s40, s40, s3")
            l2_prefetch(a, WPO // 1024, (XF0 - WPO) // 1024, 40, 32)
    a.label(done)
    a("s_endpgm")
    body = fix_hazards(a.lines)
    import re as _re
    for l in body:
        m = _re.search(r"buffer_\S+ .*offset:(\d+)", l)
        assert not m or int(m.group(1)) < 4096, l
    hdr = open("cdna_kernels/" + NAME + ".s.ref").read().split("; Override launch")[0]
    kname = NAME + "_kernel"
    nv = 256 if STAMP else 184
    return hdr + f"""; @launch grid=(256,1,1) block=(512,1,1) lds=163840
.amdgcn_target "amdgcn-amd-amdhsa--gfx950"
.text
.globl {kname}
.p2align 8
.type {kname},@function
{kname}:
""" + "\n".join(body) + f"""
.section .rodata,"a"
.p2align 6
.amdhsa_kernel {kname}
  .amdhsa_next_free_vgpr {nv}
  .amdhsa_next_free_sgpr 102
  .amdhsa_accum_offset {nv}
  .amdhsa_group_segment_fixed_size 0
  .amdhsa_kernarg_size 96
  .amdhsa_user_sgpr_count 2
  .amdhsa_user_sgpr_kernarg_segment_ptr 1
  .amdhsa_system_sgpr_workgroup_id_x 1
.end_amdhsa_kernel
"""

if __name__ == "__main__":
    out = sys.argv[1]
    if "stamp" in sys.argv[2:]:
        STAMP = True
    if "fallback" in sys.argv[2:]:
        FORCE_FALLBACK = True
    open(out, "w").write(build())
    if STAMP:
        open(out + ".names", "w").write("\n".join(STAMP_NAMES))
    print("ws used", WS_USED)
```

```python
import sys
from asmlib import *
import struct

NAME = "interleave_layers__linear_kernel_hedgehog__mixer_s_mlp__prompt"
S, D, F, H, DH = 2048, 448, 1792, 16, 28
XBYTES = S * D * 2
off = 0
def region(n):
    global off
    o = off; off += (n + 255) // 256 * 256; return o
HEADW = 86 * 1024
WPQKV = region(16 * HEADW)
WPO = region(28 * 14 * 1024)
WP1 = region(28 * 14 * 1024)
WP2 = region(28 * 14 * 1024)
WP3 = region(112 * 14 * 1024)
WP4 = region(28 * 56 * 1024)
XF0 = region(128 * 14 * 1024)
NFRAG = off // 1024
KVACC = [region(16 * 8192) for _ in range(2)]
FLG = region(16384)
ZERO_BYTES = 2 * 131072 + 16384
assert FLG == KVACC[0] + 262144
OB = [region(XBYTES) for _ in range(2)]
XA = [region(XBYTES) for _ in range(2)]
XN = [region(XBYTES) for _ in range(2)]
HB = [region(XBYTES) for _ in range(2)]
X1 = [region(XBYTES) for _ in range(2)]
H2 = [region(S * F * 2) for _ in range(2)]
XB0 = region(XBYTES)
PBAR = region(2048)
STAMPS = region(65536)
WS_USED = off
F_KV, F_O, F_XA, F_H, F_X1, F_H2, F_XB, F_HR, F_LAYER = 0, 256, 512, 768, 1024, 1280, 1536, 1792, 2048
MODE, VWG = 80, 81
FORCE_FALLBACK = False

LOG2E = 1.4426950408889634
def f2u(x): return struct.unpack("<I", struct.pack("<f", x))[0]

WS, AX, OUT, DBG = 94, 96, 98, 92
RB7, CB7, RB16, C16, TT, KH = 84, 85, 86, 87, 88, 89
RB5, C5 = 82, 83
M_G3, M_M12GE, M_M12, M_GLT2 = 52, 54, 56, 58
ONES, L2E = 60, 61
SC = " sc1"
SCA = ""
SCW = ""
SPIN_MAX = 1 << 16

STAMP = False
stamp_idx = [0]
def stamp(a, name=""):
    if not STAMP: return
    i = stamp_idx[0]; stamp_idx[0] += 1
    sk = a.newlabel("st")
    a("s_memtime s[74:75]")
    a("s_cmp_lg_u32 s2, 5"); a(f"s_cbranch_scc1 {sk}")
    a("s_waitcnt lgkmcnt(0)")
    srd(a, 76, WS, STAMPS, 65536)
    a("s_lshl_b32 s75, s3, 2")
    a("v_mov_b32 v250, s74"); a("v_mov_b32 v251, s75")
    a(f"buffer_store_dword v250, v251, s[76:79], 0 offen offset:{i*32}")
    a.label(sk)
    STAMP_NAMES.append(name)
STAMP_NAMES = []
def gstamp(a, slot):
    if not STAMP: return
    sk = a.newlabel("gst")
    a("s_cmp_lg_u32 s3, 0"); a(f"s_cbranch_scc1 {sk}")
    a("s_memrealtime s[74:75]")
    a("s_waitcnt lgkmcnt(0)")
    srd(a, 76, WS, STAMPS + 32768, 32768)
    a("s_lshl_b32 s75, s2, 2")
    a("v_mov_b32 v250, s74"); a("v_mov_b32 v251, s75")
    a(f"buffer_store_dword v250, v251, s[76:79], 0 offen offset:{slot*1024}")
    a.label(sk)

def srd(a, d, base, offset, size):
    if offset:
        a(f"s_add_u32 s{d}, s{base}, {offset}")
        a(f"s_addc_u32 s{d+1}, s{base+1}, 0")
    else:
        a(f"s_mov_b32 s{d}, s{base}")
        a(f"s_mov_b32 s{d+1}, s{base+1}")
    a(f"s_mov_b32 s{d+2}, {size}")
    a(f"s_mov_b32 s{d+3}, 0x00020000")

def srd_soff(a, d, base, offset, soff, size):
    a(f"s_add_u32 s{d}, s{base}, s{soff}")
    a(f"s_addc_u32 s{d+1}, s{base+1}, 0")
    if offset:
        a(f"s_add_u32 s{d}, s{d}, {offset}")
        a(f"s_addc_u32 s{d+1}, s{d+1}, 0")
    a(f"s_mov_b32 s{d+2}, {size}")
    a(f"s_mov_b32 s{d+3}, 0x00020000")

def lds_frag(idx):
    if idx < 64: return ("v2", idx * 1024)
    if idx < 128: return ("v5", (idx - 64) * 1024)
    assert idx < 160
    return ("v13", (idx - 128) * 1024)

def allred_groups(a, op, r, t):
    a(f"v_mov_b32 v{t}, v{r}")
    a(f"v_permlane32_swap_b32 v{r}, v{t}")
    a(f"{op} v{r}, v{r}, v{t}")
    a(f"v_mov_b32 v{t}, v{r}")
    a(f"v_permlane16_swap_b32 v{r}, v{t}")
    a(f"{op} v{r}, v{r}, v{t}")

def allred_row16(a, op, regs):
    for rot in (8, 4, 2, 1):
        for r in regs:
            a(f"{op}_dpp v{r}, v{r}, v{r} row_ror:{rot} row_mask:0xf bank_mask:0xf")

def bf16_round(a, r):
    a(f"v_cvt_pk_bf16_f32 v{r}, v{r}, v{r}")
    a(f"v_and_b32 v{r}, 0xffff0000, v{r}")

def ln_stats(a, xa, n, s1, s2, s1b, s2b):
    a(f"v_mov_b32 v{s1}, 0"); a(f"v_mov_b32 v{s2}, 0"); a(f"v_mov_b32 v{s1b}, 0"); a(f"v_mov_b32 v{s2b}, 0")
    for i in range(n):
        d1, d2 = (s1, s2) if i % 2 == 0 else (s1b, s2b)
        a(f"v_dot2_f32_bf16 v{d1}, v{xa+i}, s{ONES}, v{d1}")
        a(f"v_dot2_f32_bf16 v{d2}, v{xa+i}, v{xa+i}, v{d2}")
    a(f"v_add_f32 v{s1}, v{s1}, v{s1b}")
    a(f"v_add_f32 v{s2}, v{s2}, v{s2b}")
    allred_groups(a, "v_add_f32", s1, s1b)
    allred_groups(a, "v_add_f32", s2, s2b)

def ln_finish(a, xa, n, s1, s2, tp, ntp=4):
    R, M = tp, tp + 2
    a(f"v_mul_f32 v{s1}, {f2u(1.0/448):#x}, v{s1}")
    a(f"v_mul_f32 v{s2}, {f2u(1.0/448):#x}, v{s2}")
    a(f"v_fma_f32 v{s2}, -v{s1}, v{s1}, v{s2}")
    a(f"v_max_f32 v{s2}, 0, v{s2}")
    bf16_round(a, s1)
    bf16_round(a, s2)
    a(f"v_add_f32 v{s2}, {f2u(1e-5):#x}, v{s2}")
    bf16_round(a, s2)
    a(f"v_sqrt_f32 v{s2}, v{s2}")
    bf16_round(a, s2)
    a(f"v_rcp_f32 v{R}, v{s2}")
    a(f"v_mul_f32 v{M}, v{s1}, v{R}")
    a(f"v_sub_f32 v{M}, 0, v{M}")
    for i in range(n):
        t = tp + 4 + 2 * (i % ntp)
        a(f"v_lshlrev_b32 v{t}, 16, v{xa+i}")
        a(f"v_and_b32 v{t+1}, 0xffff0000, v{xa+i}")
        a(f"v_pk_fma_f32 v[{t}:{t+1}], v[{t}:{t+1}], v[{R}:{R+1}], v[{M}:{M+1}] op_sel_hi:[1,0,0]")
        a(f"v_cvt_pk_bf16_f32 v{xa+i}, v{t}, v{t+1}")

def gelu_pairs(a, regs, tmp):
    n = len(regs)
    for i in range(0, n, 2):
        r0, r1 = regs[i], regs[i + 1]
        a(f"v_cvt_pk_bf16_f32 v{r1}, v{r0}, v{r1}")
        a(f"v_lshlrev_b32 v{r0}, 16, v{r1}")
        a(f"v_and_b32 v{r1}, 0xffff0000, v{r1}")
    for base in range(0, n, 4):
        grp = regs[base:base + 4]
        for k, r in enumerate(grp): a(f"v_mul_f32 v{tmp+k}, v{r}, v{r}")
        for k, r in enumerate(grp): a(f"v_fma_f32 v{tmp+k}, v{tmp+k}, s90, 1.0")
        for k, r in enumerate(grp): a(f"v_mul_f32 v{tmp+k}, v{tmp+k}, v{r}")
        for k, r in enumerate(grp): a(f"v_mul_f32 v{tmp+k}, s91, v{tmp+k}")
        for k, r in enumerate(grp): a(f"v_exp_f32 v{tmp+k}, v{tmp+k}")
        for k, r in enumerate(grp): a(f"v_add_f32 v{tmp+k}, 1.0, v{tmp+k}")
        for k, r in enumerate(grp): a(f"v_rcp_f32 v{tmp+k}, v{tmp+k}")
        for k, r in enumerate(grp): a(f"v_mul_f32 v{r}, v{r}, v{tmp+k}")

def dma_frags(a, srdW, first_s, count, lds_base, tmp_s):
    a(f"s_lshl_b32 s{tmp_s}, s{first_s}, 10")
    a(f"s_add_u32 s{tmp_s+1}, s{tmp_s}, {lds_base & 0xffffffff}")
    i = 0
    while i < count:
        a(f"s_mov_b32 m0, s{tmp_s+1}")
        for k in range(min(4, count - i)):
            a(f"buffer_load_dwordx4 v2, s[{srdW}:{srdW+3}], s{tmp_s} offen offset:{k*1024}{SCW} lds")
        i += 4
        if i < count:
            a(f"s_add_u32 s{tmp_s}, s{tmp_s}, 4096")
            a(f"s_add_u32 s{tmp_s+1}, s{tmp_s+1}, 4096")

def flag_srd(a):
    srd(a, 28, WS, FLG, 16384)

def signal(a, idx_s, local=True, remote_too=None, pre=None, npre=0, prebar=False):
    sk = a.newlabel("sig"); fb = a.newlabel("sigfb"); jn = a.newlabel("sigj")
    a(f"s_waitcnt vmcnt(0)")
    a("s_barrier")
    a("s_cmp_lg_u32 s3, 0"); a(f"s_cbranch_scc1 {sk}")
    flag_srd(a)
    a(f"s_lshl_b32 s48, s{idx_s}, 2")
    a("v_mov_b32 v6, 1"); a("v_mov_b32 v7, s48")
    a("s_mov_b64 exec, 1")
    if local:
        a(f"s_cmp_lg_u32 s{MODE}, 0"); a(f"s_cbranch_scc1 {fb}")
        a(f"buffer_store_dword v6, v7, s[28:31], 0 offen")
        a(f"s_branch {jn}")
        a.label(fb)
        a("buffer_wbl2 sc1")
        a("s_waitcnt vmcnt(0)")
        a(f"buffer_store_dword v6, v7, s[28:31], 0 offen sc1")
        a.label(jn)
    else:
        a(f"buffer_store_dword v6, v7, s[28:31], 0 offen sc1")
    if remote_too is not None:
        nr = a.newlabel("signr")
        a(f"s_cmp_eq_u32 s{remote_too}, 0"); a(f"s_cbranch_scc1 {nr}")
        a(f"v_add_u32 v7, {(F_HR-F_H)*4}, v7")
        a(f"buffer_store_dword v6, v7, s[28:31], 0 offen sc1")
        a.label(nr)
    a("s_mov_b64 exec, -1")
    a.label(sk)
    if pre is not None: pre(a)

def wait_flags(a, base_s, mode):
    sk = a.newlabel("wsk"); lp = a.newlabel("wlp"); dn = a.newlabel("wdn")
    a("s_cmp_lg_u32 s3, 0"); a(f"s_cbranch_scc1 {sk}")
    flag_srd(a)
    a("s_mov_b32 s50, 0")
    if mode[0] == 'x4':
        a(f"s_lshl_b32 s48, s{base_s}, 2")
        a("v_add_u32 v6, s48, v2")
        a.label(lp)
        a(f"buffer_load_dwordx4 v[8:11], v6, s[28:31], 0 offen{SC}")
        a("s_waitcnt vmcnt(0)")
        a("v_min_u32 v8, v8, v9"); a("v_min_u32 v10, v10, v11"); a("v_min_u32 v8, v8, v10")
        a("v_cmp_ne_u32 vcc, 0, v8")
        a("s_cmp_eq_u64 vcc, -1"); a(f"s_cbranch_scc1 {dn}")
    else:
        a(f"v_add_u32 v6, s{base_s}, v1")
        if mode[0] == 'n':
            a(f"v_cmp_le_u32 s[48:49], {mode[1]}, v1")
        elif mode[0] == 'rows':
            a("v_and_b32 v7, 7, v1")
            a("v_cmp_eq_u32 s[48:49], 7, v7")
            a(f"v_cmp_le_u32 vcc, {mode[1]*8}, v1")
            a("s_or_b64 s[48:49], s[48:49], vcc")
        elif mode[0] == 'rb3':
            a("v_and_b32 v7, 7, v1")
            a("v_cmp_eq_u32 s[48:49], 7, v7")
            a("v_cmp_le_u32 vcc, 24, v1")
            a("s_or_b64 s[48:49], s[48:49], vcc")
            a("v_lshrrev_b32 v7, 3, v1")
            a(f"v_add_u32 v7, s{mode[1]}, v7")
            a("v_cmp_eq_u32 vcc, 0, v7")
            a("s_or_b64 s[48:49], s[48:49], vcc")
            a("v_cmp_lt_u32 vcc, 32, v7")
            a("s_or_b64 s[48:49], s[48:49], vcc")
            a(f"s_and_b32 s51, s{mode[1]}, 3")
            a("s_cmp_eq_u32 s51, 0"); a(f"s_cselect_b32 s45, {F_HR-F_H}, 0")
            a("s_cmp_eq_u32 s51, 3"); a(f"s_cselect_b32 s51, {F_HR-F_H}, 0")
            a("v_cmp_gt_u32 vcc, 8, v1"); a("v_mov_b32 v7, s45"); a("v_cndmask_b32 v7, 0, v7, vcc"); a("v_add_u32 v6, v6, v7")
            a("v_cmp_le_u32 vcc, 16, v1"); a("v_mov_b32 v7, s51"); a("v_cndmask_b32 v7, 0, v7, vcc"); a("v_add_u32 v6, v6, v7")
        a("v_lshlrev_b32 v6, 2, v6")
        a("v_cndmask_b32 v6, v6, 0, s[48:49]")
        a.label(lp)
        a(f"buffer_load_dword v8, v6, s[28:31], 0 offen{SC}")
        a("s_waitcnt vmcnt(0)")
        a("v_cmp_ne_u32 vcc, 0, v8")
        a("s_or_b64 vcc, vcc, s[48:49]")
        a("s_cmp_eq_u64 vcc, -1"); a(f"s_cbranch_scc1 {dn}")
    a("s_sleep 1")
    a("s_add_u32 s50, s50, 1")
    a(f"s_cmp_lt_u32 s50, {SPIN_MAX}"); a(f"s_cbranch_scc1 {lp}")
    a.label(dn)
    a(f"s_cmp_eq_u32 s{MODE}, 0"); a(f"s_cbranch_scc1 {sk}")
    a("buffer_inv sc1")
    a("s_waitcnt vmcnt(0)")
    a.label(sk)
    a("s_barrier")

def pre_k1(a):
    a(f"s_mul_i32 s42, s{C16}, {HEADW}")
    srd_soff(a, 12, WS, WPQKV, 42, HEADW)
    a("s_mul_i32 s43, s3, 11")
    skip = a.newlabel("k1skip")
    dma_frags(a, 12, 43, 9, 0, 44)
    a("s_cmp_eq_u32 s3, 7"); a(f"s_cbranch_scc1 {skip}")
    a("s_add_u32 s43, s43, 9")
    dma_frags(a, 12, 43, 2, 0, 44)
    a.label(skip)

def pre_w56(a, WP, base):
    a(f"s_mul_i32 s44, s{CB7}, 57344")
    srd_soff(a, 12, WS, WP, 44, 57344)
    a("s_mul_i32 s46, s3, 7")
    dma_frags(a, 12, 46, 7, base, 44)

def pre_k5a(a):
    a(f"s_mul_i32 s44, s{C5}, 114688")
    srd_soff(a, 12, WS, WP3, 44, 114688)
    sk = a.newlabel("k5a")
    a("s_mul_i32 s46, s3, 11"); a("s_cmp_eq_u32 s3, 7"); a("s_cselect_b32 s46, 75, s46")
    dma_frags(a, 12, 46, 9, 57344, 44)
    a("s_cmp_ge_u32 s3, 6"); a(f"s_cbranch_scc1 {sk}")
    a("s_add_u32 s46, s46, 9")
    dma_frags(a, 12, 46, 2, 57344, 44)
    a.label(sk)
def pre_k5b(a):
    sk = a.newlabel("k5b")
    a(f"s_mul_i32 s44, s{C5}, 114688")
    srd_soff(a, 12, WS, WP3, 44, 114688)
    a("s_mul_i32 s46, s3, 3"); a("s_min_u32 s47, s3, 4"); a("s_add_u32 s46, s46, s47"); a("s_add_u32 s46, s46, 84")
    dma_frags(a, 12, 46, 3, -84 * 1024, 44)
    a("s_cmp_ge_u32 s3, 4"); a(f"s_cbranch_scc1 {sk}")
    a("s_add_u32 s46, s46, 3")
    dma_frags(a, 12, 46, 1, -84 * 1024, 44)
    a.label(sk)

SLOT = 32768
def k6_setup(a):
    a(f"s_mul_i32 s44, s{CB7}, 229376")
    srd_soff(a, 12, WS, WP4, 44, 229376)
    a("s_lshr_b32 s44, s3, 1"); a("s_and_b32 s45, s3, 1")
    a("s_mul_i32 s46, s44, 56"); a("s_mul_i32 s47, s45, 28"); a("s_add_u32 s46, s46, s47"); a("s_lshl_b32 s46, s46, 10")
    a("s_lshl_b32 s47, s3, 12")
def k6_chunk(a, c):
    a(f"s_add_u32 s44, s46, {c*4096}")
    a(f"s_add_u32 s45, s47, {(c&3)*SLOT}")
    a("s_mov_b32 m0, s45")
    for k in range(4):
        a(f"buffer_load_dwordx4 v2, s[12:15], s44 offen offset:{k*1024}{SCW} lds")
def pre_k6(a):
    k6_setup(a)
    for c in range(4): k6_chunk(a, c)

b_o = 1376; b_1 = b_o + 392; b_2 = b_1 + 392; b_3 = b_2 + 392; b_4 = b_3 + 1568
b_x = b_4 + 1568
assert b_x + 1792 == NFRAG
w_phi0 = 14 * 96
def prep_part(a, part, nit, stride, start=0):
    a("s_load_dwordx4 s[4:7], s[0:1], 8")
    a("s_load_dwordx2 s[36:37], s[0:1], 24")
    a("s_load_dwordx4 s[40:43], s[0:1], 40")
    a("s_load_dwordx4 s[44:47], s[0:1], 56")
    srd(a, 8, WS, 0, NFRAG * 1024)
    a("v_lshrrev_b32 v6, 2, v3"); a("v_and_b32 v7, 3, v3")
    a("v_lshl_add_u32 v8, v6, 3, v7")
    a("v_mov_b32 v15, 0x40000000")
    a("s_waitcnt lgkmcnt(0)")
    for it in range(nit):
        R = 32 + it * 8
        DS = 76 + it
        a(f"s_add_u32 s50, s49, {start + stride*it}")
        if part == 0:
            pass
        elif part == 1:
            a(f"s_cmp_ge_u32 s50, 1376"); a(f"s_cselect_b32 s62, {b_x-1376}, 0"); a("s_add_u32 s50, s50, s62")
        elif part == 2:
            a(f"s_add_u32 s50, s50, {b_o}"); a(f"s_cmp_ge_u32 s50, {b_3}"); a(f"s_cselect_b32 s50, {NFRAG}, s50")
        else:
            a(f"s_add_u32 s50, s50, {b_3}"); a(f"s_cmp_ge_u32 s50, {b_x}"); a(f"s_cselect_b32 s50, {NFRAG}, s50")
        a(f"s_mov_b32 s{32+it}, s50")
        std = a.newlabel("k0std"); perm = a.newlabel("k0perm"); nxt = a.newlabel("k0nxt")
        t_o, t_1, t_2, t_3, t_4, t_phi, t_x, colgen = [a.newlabel("k0t") for _ in range(8)]
        a(f"s_cmp_ge_u32 s50, {NFRAG}"); a(f"s_cbranch_scc1 {nxt}")
        a(f"s_cmp_ge_u32 s50, {b_x}"); a(f"s_cbranch_scc1 {t_x}")
        a(f"s_cmp_ge_u32 s50, {b_4}"); a(f"s_cbranch_scc1 {t_4}")
        a(f"s_cmp_ge_u32 s50, {b_3}"); a(f"s_cbranch_scc1 {t_3}")
        a(f"s_cmp_ge_u32 s50, {b_2}"); a(f"s_cbranch_scc1 {t_2}")
        a(f"s_cmp_ge_u32 s50, {b_1}"); a(f"s_cbranch_scc1 {t_1}")
        a(f"s_cmp_ge_u32 s50, {b_o}"); a(f"s_cbranch_scc1 {t_o}")
        a(f"s_cmp_ge_u32 s50, {w_phi0}"); a(f"s_cbranch_scc1 {t_phi}")
        a(f"s_mov_b32 s62, {magic(96)}")
        a("s_mul_hi_u32 s66, s50, s62")
        a("s_mul_i32 s64, s66, 96")
        a("s_sub_u32 s64, s50, s64")
        a("s_lshr_b32 s67, s64, 5")
        a("s_bfe_u32 s63, s64, 0x40001")
        a("s_and_b32 s68, s64, 1")
        a("s_lshl_b32 s65, s67, 1"); a("s_add_u32 s65, s65, s68"); a("s_mul_i32 s65, s65, 14"); a("s_add_u32 s65, s65, s66")
        a(f"s_mul_i32 s{DS}, s63, 86"); a(f"s_add_u32 s{DS}, s{DS}, s65")
        a("s_mul_i32 s67, s67, 448")
        a("s_mul_i32 s69, s63, 28")
        a("s_add_u32 s67, s67, s69")
        a("s_lshl_b32 s69, s68, 4")
        a("s_add_u32 s67, s67, s69")
        srd(a, 12, 4, 0, 448 * 1344 * 2)
        a("s_mov_b32 s70, 2688")
        a("s_mul_i32 s71, s66, 32*2688")
        a("v_add_u32 v10, s67, v3")
        a("v_lshlrev_b32 v10, 1, v10")
        a("v_mul_u32_u24 v11, 8*2688, v4")
        a("v_add_u32 v10, v10, v11")
        a("s_cmp_eq_u32 s68, 0"); a(f"s_cbranch_scc1 {std}")
        a(f"v_cndmask_b32 v10, v10, v15, s[{M_M12GE}:{M_M12GE+1}]")
        a(f"s_branch {std}")
        a.label(t_phi)
        a(f"s_sub_u32 s64, s50, {w_phi0}")
        a("s_lshr_b32 s63, s64, 1"); a("s_and_b32 s68, s64, 1")
        a(f"s_mul_i32 s{DS}, s63, 86"); a(f"s_add_u32 s{DS}, s{DS}, s68"); a(f"s_add_u32 s{DS}, s{DS}, 84")
        srd(a, 12, 6, 0, 16 * 784 * 2)
        a("s_mov_b32 s70, 56")
        a("s_mul_i32 s71, s63, 1568")
        a("s_lshl_b32 s69, s68, 4")
        a("v_add_u32 v10, s69, v3")
        a("v_lshlrev_b32 v10, 1, v10")
        a("v_mul_u32_u24 v11, 4*56, v4")
        a("v_add_u32 v10, v10, v11")
        a("s_cmp_eq_u32 s68, 0"); a(f"s_cbranch_scc1 {perm}")
        a(f"v_cndmask_b32 v10, v10, v15, s[{M_M12GE}:{M_M12GE+1}]")
        a(f"s_branch {perm}")
        for lab, b, ptr, KS, sz in ((t_o, b_o, 36, 14, 448*448*2), (t_1, b_1, 40, 14, 448*448*2), (t_2, b_2, 42, 14, 448*448*2), (t_4, b_4, 46, 56, 1792*448*2)):
            a.label(lab)
            a(f"s_sub_u32 s64, s50, {b}")
            a(f"s_mov_b32 s62, {magic(28)}")
            a("s_mul_hi_u32 s66, s64, s62")
            a("s_mul_i32 s65, s66, 28")
            a("s_sub_u32 s65, s64, s65")
            a(f"s_mul_i32 s{DS}, s65, {KS}"); a(f"s_add_u32 s{DS}, s{DS}, s66"); a(f"s_add_u32 s{DS}, s{DS}, {b}")
            srd(a, 12, ptr, 0, sz)
            a(f"s_branch {colgen}")
        a.label(colgen)
        a("s_mov_b32 s70, 896")
        a("s_mul_i32 s71, s66, 32*896")
        a("s_lshr_b32 s67, s65, 1"); a("s_lshl_b32 s67, s67, 5")
        a("s_and_b32 s68, s65, 1"); a("s_lshl_b32 s68, s68, 2")
        a("s_add_u32 s67, s67, s68")
        a("v_add_u32 v10, s67, v8")
        a("v_lshlrev_b32 v10, 1, v10")
        a("v_mul_u32_u24 v11, 8*896, v4")
        a("v_add_u32 v10, v10, v11")
        a(f"s_branch {std}")
        a.label(t_x)
        a(f"s_mov_b32 s{DS}, s50")
        a(f"s_sub_u32 s64, s50, {b_x}")
        a(f"s_mov_b32 s62, {magic(14)}")
        a("s_mul_hi_u32 s65, s64, s62")
        a("s_mul_i32 s66, s65, 14")
        a("s_sub_u32 s66, s64, s66")
        srd(a, 12, AX, 0, XBYTES)
        a("s_mul_i32 s71, s65, 16*896"); a("s_lshl_b32 s66, s66, 6"); a("s_add_u32 s71, s71, s66")
        a("v_mul_u32_u24 v10, 896, v3")
        a("v_lshl_add_u32 v10, v4, 4, v10")
        a(f"buffer_load_dwordx4 v[{R}:{R+3}], v10, s[12:15], s71 offen")
        a(f"s_branch {nxt}")
        a.label(t_3)
        a(f"s_sub_u32 s64, s50, {b_3}")
        a(f"s_mov_b32 s62, {magic(112)}")
        a("s_mul_hi_u32 s66, s64, s62")
        a("s_mul_i32 s65, s66, 112")
        a("s_sub_u32 s65, s64, s65")
        a(f"s_mul_i32 s{DS}, s65, 14"); a(f"s_add_u32 s{DS}, s{DS}, s66"); a(f"s_add_u32 s{DS}, s{DS}, {b_3}")
        srd(a, 12, 44, 0, 448 * 1792 * 2)
        a("s_mov_b32 s70, 3584")
        a("s_mul_i32 s71, s66, 32*3584")
        a("s_lshr_b32 s67, s65, 1"); a("s_lshl_b32 s67, s67, 5")
        a("s_and_b32 s68, s65, 1"); a("s_lshl_b32 s68, s68, 2")
        a("s_add_u32 s67, s67, s68")
        a("v_add_u32 v10, s67, v8")
        a("v_lshlrev_b32 v10, 1, v10")
        a("v_mul_u32_u24 v11, 8*3584, v4")
        a("v_add_u32 v10, v10, v11")
        a.label(std)
        for j in range(8):
            a(f"buffer_load_ushort v{R + j}, v10, s[12:15], s71 offen")
            if j < 7: a("s_add_u32 s71, s71, s70")
        a(f"s_branch {nxt}")
        a.label(perm)
        a(f"v_cndmask_b32 v11, v10, v15, s[{M_G3}:{M_G3+1}]")
        a("s_mul_i32 s72, s70, 13")
        for j in range(8):
            vv = 10 if j < 4 else 11
            a(f"buffer_load_ushort v{R + j}, v{vv}, s[12:15], s71 offen")
            if j == 3: a("s_add_u32 s71, s71, s72")
            elif j < 7: a("s_add_u32 s71, s71, s70")
        a.label(nxt)
    a("s_waitcnt vmcnt(0)")
    for it in range(nit):
        R = 32 + it * 8; DS = 76 + it
        a(f"s_mov_b32 s50, s{32+it}")
        nx = a.newlabel("k0sx"); st = a.newlabel("k0st")
        a(f"s_cmp_ge_u32 s50, {NFRAG}"); a(f"s_cbranch_scc1 {nx}")
        a(f"s_cmp_ge_u32 s50, {b_x}"); a(f"s_cbranch_scc1 {st}")
        for i in range(4):
            a(f"v_lshl_or_b32 v{R+i}, v{R+2*i+1}, 16, v{R+2*i}")
        a.label(st)
        a(f"s_lshl_b32 s71, s{DS}, 10")
        a(f"buffer_store_dwordx4 v[{R}:{R+3}], v2, s[8:11], s71 offen{SC}")
        a.label(nx)


TOK = 100
def pb_poll(a, bits, keep=False):
    lp = a.newlabel("pblp"); dn = a.newlabel("pbdn")
    srd(a, 28, WS, PBAR, 2048)
    a("v_lshlrev_b32 v6, 5, v1")
    a("s_mov_b32 s50, 0")
    a(f"s_or_b32 s48, s{TOK+1}, {bits}")
    a(f"s_mov_b32 s49, {0xffffff00 | bits:#x}")
    a.label(lp)
    a(f"buffer_load_dwordx4 v[16:19], v6, s[28:31], 0 offen{SC}")
    a(f"buffer_load_dwordx4 v[20:23], v6, s[28:31], 0 offen offset:16{SC}")
    a("s_waitcnt vmcnt(0)")
    a(f"v_cmp_eq_u32 vcc, s{TOK}, v16")
    for k in range(1, 4):
        a(f"v_cmp_eq_u32 s[62:63], s{TOK}, v{16+2*k}"); a("s_and_b64 vcc, vcc, s[62:63]")
    for k in range(4):
        a(f"v_and_b32 v8, s49, v{17+2*k}")
        a(f"v_cmp_eq_u32 s[62:63], s48, v8"); a("s_and_b64 vcc, vcc, s[62:63]")
    a("s_cmp_eq_u64 vcc, -1"); a(f"s_cbranch_scc1 {dn}")
    a("s_sleep 1")
    a("s_add_u32 s50, s50, 1")
    a(f"s_cmp_lt_u32 s50, {SPIN_MAX}"); a(f"s_cbranch_scc1 {lp}")
    a.label(dn)
    if keep:
        for k in range(4): a(f"v_and_b32 v{10+k}, 15, v{17+2*k}")

def pb_store(a, bits):
    srd(a, 28, WS, PBAR, 2048)
    a("s_getreg_b32 s51, hwreg(HW_REG_XCC_ID, 0, 4)")
    a("s_and_b32 s51, s51, 7"); a("s_add_u32 s44, s51, 1")
    a(f"s_or_b32 s45, s44, s{TOK+1}"); a(f"s_or_b32 s45, s45, {bits}")
    a(f"v_mov_b32 v6, s{TOK}"); a("v_mov_b32 v7, s45"); a("s_lshl_b32 s45, s2, 3"); a("v_mov_b32 v8, s45")
    a("s_mov_b64 exec, 1")
    a(f"buffer_store_dwordx2 v[6:7], v8, s[28:31], 0 offen{SC}")
    a("s_mov_b64 exec, -1")

def prep(a):
    nt = a.newlabel("ntok")
    a("s_or_b32 s44, s2, s3"); a("s_cmp_lg_u32 s44, 0"); a(f"s_cbranch_scc1 {nt}")
    a("s_memrealtime s[44:45]")
    a("s_waitcnt lgkmcnt(0)")
    a("s_or_b32 s44, s44, 1"); a("s_lshl_b32 s45, s45, 8"); a("s_xor_b32 s45, s45, 0x5a3c9600")
    srd(a, 28, DBG, 0, 256)
    a("v_mov_b32 v6, s44"); a("v_mov_b32 v7, s45"); a("v_mov_b32 v8, 0")
    a("s_mov_b64 exec, 1")
    a(f"buffer_store_dwordx2 v[6:7], v8, s[28:31], 0 offen{SC}")
    a("s_mov_b64 exec, -1")
    a.label(nt)
    srd(a, 8, WS, KVACC[0], ZERO_BYTES)
    a("s_lshl_b32 s50, s2, 9")
    a("v_add_u32 v6, s50, v0")
    a("v_lshlrev_b32 v6, 2, v6")
    a("v_mov_b32 v7, 0")
    a(f"buffer_store_dword v7, v6, s[8:11], 0 offen{SC}")
    a("s_lshl_b32 s49, s2, 3"); a("s_add_u32 s49, s49, s3")
    prep_part(a, 0, 4, 2048)
    sk = a.newlabel("pbsk"); lp = a.newlabel("tklp"); dn = a.newlabel("tkdn")
    a("s_waitcnt vmcnt(0)")
    a("s_barrier")
    stamp(a, "prep stored"); gstamp(a, 1)
    a("s_cmp_lg_u32 s3, 0"); a(f"s_cbranch_scc1 {sk}")
    srd(a, 28, DBG, 0, 256)
    a("v_mov_b32 v6, 0"); a("s_mov_b32 s50, 0")
    a.label(lp)
    a(f"buffer_load_dwordx2 v[8:9], v6, s[28:31], 0 offen{SC}")
    a("s_waitcnt vmcnt(0)")
    a(f"v_readfirstlane_b32 s{TOK}, v8"); a(f"v_readfirstlane_b32 s{TOK+1}, v9")
    a(f"s_cmp_lg_u32 s{TOK}, 0"); a(f"s_cbranch_scc1 {dn}")
    a("s_sleep 1")
    a("s_add_u32 s50, s50, 1")
    a(f"s_cmp_lt_u32 s50, {SPIN_MAX}"); a(f"s_cbranch_scc1 {lp}")
    a.label(dn)
    pb_store(a, 0)
    pb_poll(a, 0, keep=True)
    a("s_lshr_b32 s45, s2, 2"); a("s_and_b32 s46, s2, 3")
    a("s_bfm_b64 s[62:63], s45, 0")
    a("s_mov_b32 s47, 0")
    for b in range(4):
        a(f"v_cmp_eq_u32 vcc, s44, v{10+b}")
        a("s_bcnt1_i32_b64 s64, vcc")
        a("s_and_b64 vcc, vcc, s[62:63]")
        a("s_bcnt1_i32_b64 s65, vcc")
        a(f"s_cmp_gt_u32 s46, {b}"); a("s_cselect_b32 s64, s64, 0")
        a(f"s_cmp_eq_u32 s46, {b}"); a("s_cselect_b32 s65, s65, 0")
        a("s_add_u32 s47, s47, s64"); a("s_add_u32 s47, s47, s65")
    a(f"s_mov_b32 s{MODE}, {1 if FORCE_FALLBACK else 0}")
    for c in range(1, 9):
        a("s_mov_b32 s66, 0")
        for b in range(4):
            a(f"v_cmp_eq_u32 vcc, {c}, v{10+b}")
            a("s_bcnt1_i32_b64 s64, vcc")
            a("s_add_u32 s66, s66, s64")
        a("s_cmp_lg_u32 s66, 32"); a(f"s_cselect_b32 s{MODE}, 1, s{MODE}")
    a("s_lshl_b32 s47, s47, 3"); a("s_add_u32 s47, s47, s51")
    a(f"s_cmp_lg_u32 s{MODE}, 0"); a("s_cselect_b32 s47, s2, s47")
    a("v_mov_b32 v8, s47"); a(f"v_mov_b32 v9, s{MODE}"); a("v_mov_b32 v6, 163832")
    a("ds_write_b64 v6, v[8:9]")
    a("s_waitcnt lgkmcnt(0)")
    a.label(sk)
    a("s_barrier")
    a("v_mov_b32 v6, 163832")
    a("ds_read_b64 v[8:9], v6")
    a("s_waitcnt lgkmcnt(0)")
    a(f"v_readfirstlane_b32 s{VWG}, v8")
    a(f"v_readfirstlane_b32 s{MODE}, v9")

def prep_flag(a, bits):
    sk = a.newlabel("pfsk")
    a("s_waitcnt vmcnt(0)")
    a("s_barrier")
    a("s_cmp_lg_u32 s3, 0"); a(f"s_cbranch_scc1 {sk}")
    pb_store(a, bits)
    a.label(sk)

def wait_prep2(a, bit):
    sk = a.newlabel("p2sk")
    a("s_cmp_lg_u32 s3, 0"); a(f"s_cbranch_scc1 {sk}")
    pb_poll(a, bit)
    a.label(sk)
    a("s_barrier")

def load_frags(a, dst, n, srdA, soff, vaddr="v2"):
    for k in range(n):
        if k and k % 4 == 0: a(f"s_add_u32 s{soff}, s{soff}, 4096")
        a(f"buffer_load_dwordx4 v[{dst+4*k}:{dst+4*k+3}], {vaddr}, s[{srdA}:{srdA+3}], s{soff} offen offset:{(k%4)*1024}{SCA}")

def k1(a, layer):
    fl = layer * F_LAYER
    if layer == 1:
        a(f"s_lshl_b32 s40, s{RB16}, 4"); a(f"s_add_u32 s40, s40, {F_XB}")
        wait_flags(a, 40, ('rows', 2))
    stamp(a, f"k1.{layer} start")
    srd(a, 8, WS, XF0 if layer == 0 else XB0, XBYTES)
    XAr = 16
    a(f"s_lshl_b32 s47, s{RB16}, 3"); a("s_add_u32 s47, s47, s3")
    a("s_mul_i32 s44, s47, 14336")
    load_frags(a, XAr, 14, 8, 44)
    a("s_waitcnt vmcnt(0)")
    stamp(a, "loaded")
    ln_stats(a, XAr, 56, 8, 9, 10, 11)
    ln_finish(a, XAr, 56, 8, 9, 72)
    a("s_barrier")
    stamp(a, "ln")
    WB = [80, 104]; ACC = 128
    def mloop(mts):
        n = len(mts)
        def rd(ks, s):
            for i, mt in enumerate(mts):
                ad, o = lds_frag(mt * 14 + ks)
                a(f"ds_read_b128 v[{WB[s]+4*i}:{WB[s]+4*i+3}], {ad} offset:{o}")
        rd(0, 0)
        for ks in range(14):
            s = ks & 1
            if ks < 13:
                rd(ks + 1, 1 - s); a(f"s_waitcnt lgkmcnt({n})")
            else:
                a("s_waitcnt lgkmcnt(0)")
            xf = f"v[{XAr+4*ks}:{XAr+4*ks+3}]"
            for i, mt in enumerate(mts):
                wf = f"v[{WB[s]+4*i}:{WB[s]+4*i+3}]"
                acc = f"v[{ACC+4*mt}:{ACC+4*mt+3}]"
                c = "0" if ks == 0 else acc
                if mt < 4: a(f"v_mfma_f32_16x16x32_bf16 {acc}, {wf}, {xf}, {c}")
                else: a(f"v_mfma_f32_16x16x32_bf16 {acc}, {xf}, {wf}, {c}")
    mloop([2, 3, 4, 5])
    PH = 80
    def rd_phi():
        for u in range(2):
            ad, o = lds_frag(84 + u)
            a(f"ds_read_b128 v[{PH+4*u}:{PH+4*u+3}], {ad} offset:{o}")
    rd_phi()
    QF, KF = 88, 92
    for i in range(4):
        a(f"v_cvt_pk_bf16_f32 v{KF+i}, v{ACC+8+2*i}, v{ACC+8+2*i+1}")
    a("s_waitcnt lgkmcnt(0)")
    stamp(a, "mfma")
    PQ, PK = 96, 104
    for u in range(2):
        a(f"v_mfma_f32_16x16x32_bf16 v[{PK+4*u}:{PK+4*u+3}], v[{KF}:{KF+3}], v[{PH+4*u}:{PH+4*u+3}], 0")
    VV = ACC + 16
    for r in range(4):
        a(f"v_cndmask_b32 v{VV+4+r}, v{VV+4+r}, 1.0, s[{M_M12}:{M_M12+1}]")
    VB = 112
    for t in range(2):
        a(f"v_cvt_pk_bf16_f32 v{VB+2*t}, v{VV+4*t}, v{VV+4*t+1}")
        a(f"v_cvt_pk_bf16_f32 v{VB+2*t+1}, v{VV+4*t+2}, v{VV+4*t+3}")
    def rnd(base):
        for i in range(0, 8, 2):
            a(f"v_cvt_pk_bf16_f32 v{base+i+1}, v{base+i}, v{base+i+1}")
            a(f"v_lshlrev_b32 v{base+i}, 16, v{base+i+1}")
            a(f"v_and_b32 v{base+i+1}, 0xffff0000, v{base+i+1}")
    rnd(PK)
    G3 = f"s[{M_G3}:{M_G3+1}]"; MG = f"s[{M_M12GE}:{M_M12GE+1}]"
    KX, KN = 184, 188
    for r in range(4):
        a(f"v_max_f32 v{KX+r}, v{PK+r}, v{PK+4+r}")
        a(f"v_min_f32 v{KN+r}, v{PK+r}, v{PK+4+r}")
    for r in range(4):
        a(f"v_cndmask_b32 v{KX+r}, v{KX+r}, v{PK+r}, {MG}")
        a(f"v_cndmask_b32 v{KN+r}, v{KN+r}, v{PK+r}, {MG}")
    for rot in (8, 4, 2, 1):
        for r in range(4):
            a(f"v_max_f32_dpp v{KX+r}, v{KX+r}, v{KX+r} row_ror:{rot} row_mask:0xf bank_mask:0xf")
            a(f"v_min_f32_dpp v{KN+r}, v{KN+r}, v{KN+r} row_ror:{rot} row_mask:0xf bank_mask:0xf")
    for r in range(4):
        a(f"v_mul_f32 v{KX+r}, s{L2E}, v{KX+r}")
        a(f"v_mul_f32 v{KN+r}, s{L2E}, v{KN+r}")
    KP, KM = 192, 200
    for i in range(8):
        a(f"v_fma_f32 v{KP+i}, v{PK+i}, s{L2E}, -v{KX+(i&3)}")
        a(f"v_fma_f32 v{KM+i}, -v{PK+i}, s{L2E}, v{KN+(i&3)}")
    for i in range(8):
        a(f"v_exp_f32 v{KP+i}, v{KP+i}")
        a(f"v_exp_f32 v{KM+i}, v{KM+i}")
    for i in range(4, 8):
        a(f"v_cndmask_b32 v{KP+i}, v{KP+i}, 0, {MG}")
        a(f"v_cndmask_b32 v{KM+i}, v{KM+i}, 0, {MG}")
    for r in range(4):
        a(f"v_add_f32 v{KX+r}, v{KP+r}, v{KP+4+r}")
        a(f"v_add_f32 v{KN+r}, v{KM+r}, v{KM+4+r}")
    allred_row16(a, "v_add_f32", [KX + r for r in range(4)] + [KN + r for r in range(4)])
    for r in range(4):
        a(f"v_rcp_f32 v{KX+r}, v{KX+r}"); a(f"v_rcp_f32 v{KN+r}, v{KN+r}")
    for i in range(8):
        a(f"v_mul_f32 v{KP+i}, v{KP+i}, v{KX+(i&3)}")
        a(f"v_mul_f32 v{KM+i}, v{KM+i}, v{KN+(i&3)}")
    KA_ = 208
    for part, E in enumerate((KP, KM)):
        for u in range(2):
            d = KA_ + (part * 2 + u) * 2
            a(f"v_cvt_pk_bf16_f32 v{d}, v{E+4*u}, v{E+4*u+1}")
            a(f"v_cvt_pk_bf16_f32 v{d+1}, v{E+4*u+2}, v{E+4*u+3}")
    KV = 216
    for part in range(2):
        for t in range(2):
            for u in range(2):
                d = KV + (part * 2 + t) * 8 + u * 4
                af = KA_ + (part * 2 + u) * 2
                a(f"v_mfma_f32_16x16x16_bf16 v[{d}:{d+3}], v[{af}:{af+1}], v[{VB+2*t}:{VB+2*t+1}], 0")
    LRED = 88064
    a("v_lshlrev_b32 v6, 2, v1")
    a("s_lshl_b32 s44, s3, 13"); a(f"s_add_u32 s44, s44, {LRED}")
    a("v_add_u32 v7, s44, v6")
    for i in range(32):
        a(f"ds_write_b32 v7, v{KV+i} offset:{i*256}")
    a("s_waitcnt lgkmcnt(0)")
    a("s_barrier")
    a("s_lshl_b32 s44, s3, 10"); a(f"s_add_u32 s44, s44, {LRED}")
    a("v_add_u32 v7, s44, v6")
    RR = 216
    for i in range(4):
        for ww in range(8):
            a(f"ds_read_b32 v{RR+i*8+ww}, v7 offset:{ww*8192+i*256}")
    a("s_waitcnt lgkmcnt(0)")
    for i in range(4):
        b = RR + i * 8
        a(f"v_add_f32 v{b}, v{b}, v{b+1}"); a(f"v_add_f32 v{b+2}, v{b+2}, v{b+3}")
        a(f"v_add_f32 v{b+4}, v{b+4}, v{b+5}"); a(f"v_add_f32 v{b+6}, v{b+6}, v{b+7}")
        a(f"v_add_f32 v{b}, v{b}, v{b+2}"); a(f"v_add_f32 v{b+4}, v{b+4}, v{b+6}")
        a(f"v_add_f32 v{b}, v{b}, v{b+4}")
    srd(a, 20, WS, KVACC[layer], 131072)
    a(f"s_lshl_b32 s44, s{C16}, 13"); a("s_lshl_b32 s45, s3, 10"); a("s_add_u32 s44, s44, s45")
    for i in range(4):
        a(f"buffer_atomic_add_f32 v{RR+i*8}, v6, s[20:23], s44 offen offset:{i*256}{SC}")
    a(f"s_add_u32 s40, s2, {fl+F_KV}")
    signal(a, 40, local=False)
    stamp(a, "kv signalled")
    mloop([0, 1])
    rd_phi()
    for i in range(4):
        a(f"v_cvt_pk_bf16_f32 v{QF+i}, v{ACC+2*i}, v{ACC+2*i+1}")
    a("s_waitcnt lgkmcnt(0)")
    for u in range(2):
        a(f"v_mfma_f32_16x16x32_bf16 v[{PQ+4*u}:{PQ+4*u+3}], v[{PH+4*u}:{PH+4*u+3}], v[{QF}:{QF+3}], 0")
    rnd(PQ)
    a("s_barrier")
    sk = a.newlabel("k1pre")
    a(f"s_cmp_ge_u32 s{VWG}, 224"); a(f"s_cbranch_scc1 {sk}")
    pre_w56(a, WPO, 0)
    a.label(sk)
    MX, MN, T0, T1 = 8, 9, 10, 11
    a(f"v_max3_f32 v{MX}, v{PQ}, v{PQ+1}, v{PQ+2}"); a(f"v_max_f32 v{MX}, v{MX}, v{PQ+3}")
    a(f"v_min3_f32 v{MN}, v{PQ}, v{PQ+1}, v{PQ+2}"); a(f"v_min_f32 v{MN}, v{MN}, v{PQ+3}")
    a(f"v_max3_f32 v{T0}, v{PQ+4}, v{PQ+5}, v{PQ+6}"); a(f"v_max3_f32 v{T0}, v{T0}, v{PQ+7}, v{MX}")
    a(f"v_min3_f32 v{T1}, v{PQ+4}, v{PQ+5}, v{PQ+6}"); a(f"v_min3_f32 v{T1}, v{T1}, v{PQ+7}, v{MN}")
    a(f"v_cndmask_b32 v{MX}, v{T0}, v{MX}, {G3}")
    a(f"v_cndmask_b32 v{MN}, v{T1}, v{MN}, {G3}")
    allred_groups(a, "v_max_f32", MX, T0)
    allred_groups(a, "v_min_f32", MN, T1)
    a(f"v_mul_f32 v{MX}, s{L2E}, v{MX}")
    a(f"v_mul_f32 v{MN}, s{L2E}, v{MN}")
    EP, EM = 16, 24
    for i in range(8):
        a(f"v_fma_f32 v{EP+i}, v{PQ+i}, s{L2E}, -v{MX}")
        a(f"v_fma_f32 v{EM+i}, -v{PQ+i}, s{L2E}, v{MN}")
    for i in range(8):
        a(f"v_exp_f32 v{EP+i}, v{EP+i}")
        a(f"v_exp_f32 v{EM+i}, v{EM+i}")
    for i in range(4, 8):
        a(f"v_cndmask_b32 v{EP+i}, v{EP+i}, 0, {G3}")
        a(f"v_cndmask_b32 v{EM+i}, v{EM+i}, 0, {G3}")
    for E, Sg in ((EP, MX), (EM, MN)):
        a(f"v_add_f32 v{Sg}, v{E}, v{E+1}")
        for i in range(2, 8): a(f"v_add_f32 v{Sg}, v{Sg}, v{E+i}")
    allred_groups(a, "v_add_f32", MX, T0)
    allred_groups(a, "v_add_f32", MN, T1)
    a(f"v_rcp_f32 v{MX}, v{MX}"); a(f"v_rcp_f32 v{MN}, v{MN}")
    for i in range(8):
        a(f"v_mul_f32 v{EP+i}, v{EP+i}, v{MX}")
        a(f"v_mul_f32 v{EM+i}, v{EM+i}, v{MN}")
    OQ = 176
    for i in range(4):
        a(f"v_cvt_pk_bf16_f32 v{OQ+i}, v{EP+2*i}, v{EP+2*i+1}")
        a(f"v_cvt_pk_bf16_f32 v{OQ+4+i}, v{EM+2*i}, v{EM+2*i+1}")
    a(f"s_mov_b32 s40, {fl+F_KV}")
    wait_flags(a, 40, ('x4',))
    stamp(a, "kv arrived")

    KL = 16
    a("v_lshlrev_b32 v6, 2, v1")
    a("v_lshlrev_b32 v7, 6, v4"); a("v_add_u32 v7, 48, v7")
    a(f"s_lshl_b32 s44, s{C16}, 13"); a("s_add_u32 s45, s44, 4096")
    for fi in range(4):
        for j in range(8):
            o = fi * 2048 + j * 256
            a(f"buffer_load_dword v{KL+fi*8+j}, v6, s[20:23], s{44 + o//4096} offen offset:{o%4096}{SC}")
    for part in range(2):
        for j in range(8):
            o = (part * 2 + 1) * 2048 + j * 256
            a(f"buffer_load_dword v{KL+32+part*8+j}, v7, s[20:23], s{44 + o//4096} offen offset:{o%4096}{SC}")
    a("s_waitcnt vmcnt(0)")
    KC = 64
    for fi in range(6):
        for i in range(4):
            a(f"v_cvt_pk_bf16_f32 v{KC+fi*4+i}, v{KL+fi*8+2*i}, v{KL+fi*8+2*i+1}")
    NUM, DEN, OF = 96, 104, 108
    for part in range(2):
        pf = f"v[{OQ+4*part}:{OQ+4*part+3}]"
        for t in range(2):
            kf = KC + (part * 2 + t) * 4
            c = "0" if part == 0 else f"v[{NUM+4*t}:{NUM+4*t+3}]"
            a(f"v_mfma_f32_16x16x32_bf16 v[{NUM+4*t}:{NUM+4*t+3}], v[{kf}:{kf+3}], {pf}, {c}")
        c = "0" if part == 0 else f"v[{DEN}:{DEN+3}]"
        a(f"v_mfma_f32_16x16x32_bf16 v[{DEN}:{DEN+3}], v[{KC+16+4*part}:{KC+16+4*part+3}], {pf}, {c}")
    bf16_round(a, DEN)
    a(f"v_add_f32 v{DEN}, {f2u(1e-6):#x}, v{DEN}")
    bf16_round(a, DEN)
    a(f"v_rcp_f32 v{DEN}, v{DEN}")
    round8(a, NUM)
    for k in range(8): a(f"v_mul_f32 v{NUM+k}, v{NUM+k}, v{DEN}")
    pack8(a, NUM, OF)
    srd(a, 16, WS, OB[layer], XBYTES)
    a(f"s_mul_i32 s44, s{C16}, 28")
    a("v_lshl_add_u32 v8, v4, 2, s44")
    for t, vo in ((0, 6), (1, 7)):
        if t: a("v_add_u32 v8, 16, v8")
        a(f"v_lshrrev_b32 v9, 5, v8"); a(f"v_lshlrev_b32 v{vo}, 10, v9")
        a("v_bfe_u32 v9, v8, 3, 2"); a(f"v_lshl_add_u32 v{vo}, v9, 8, v{vo}")
        a(f"v_lshl_add_u32 v{vo}, v3, 4, v{vo}")
        a("v_and_b32 v9, 7, v8"); a(f"v_lshl_add_u32 v{vo}, v9, 1, v{vo}")
    a("v_mov_b32 v8, 0x40000000")
    a(f"v_cndmask_b32 v7, v7, v8, {G3}")
    a("s_mul_i32 s44, s47, 14336")
    a(f"buffer_store_dwordx2 v[{OF}:{OF+1}], v6, s[16:19], s44 offen{SCA}")
    a(f"buffer_store_dwordx2 v[{OF+2}:{OF+3}], v7, s[16:19], s44 offen{SCA}")
    a(f"s_lshl_b32 s40, s{RB16}, 4"); a(f"s_add_u32 s40, s40, s{C16}"); a(f"s_add_u32 s40, s40, {fl+F_O}")
    signal(a, 40)
    stamp(a, "o signalled")

def half_exchange(a, ACC, RED, T):
    lo = a.newlabel("hx_lo"); j1 = a.newlabel("hx_j1")
    a(f"s_lshl_b32 s44, s{TT}, 1"); a(f"s_add_u32 s44, s44, s{KH}"); a("s_lshl_b32 s45, s44, 11")
    a("s_xor_b32 s44, s44, 1"); a("s_lshl_b32 s44, s44, 11")
    a(f"s_add_u32 s45, s45, {RED}"); a(f"s_add_u32 s44, s44, {RED}")
    a(f"v_add_u32 v6, s45, v2")
    a(f"v_add_u32 v7, s44, v2")
    a(f"s_cmp_eq_u32 s{KH}, 0"); a(f"s_cbranch_scc1 {lo}")
    a(f"ds_write_b128 v6, v[{ACC}:{ACC+3}]")
    a(f"ds_write_b128 v6, v[{ACC+4}:{ACC+7}] offset:1024")
    for i in range(8): a(f"v_mov_b32 v{T+i}, v{ACC+8+i}")
    a(f"s_branch {j1}")
    a.label(lo)
    a(f"ds_write_b128 v6, v[{ACC+8}:{ACC+11}]")
    a(f"ds_write_b128 v6, v[{ACC+12}:{ACC+15}] offset:1024")
    for i in range(8): a(f"v_mov_b32 v{T+i}, v{ACC+i}")
    a.label(j1)
    a("s_waitcnt lgkmcnt(0)")
    a("s_barrier")
    a(f"ds_read_b128 v[{ACC}:{ACC+3}], v7")
    a(f"ds_read_b128 v[{ACC+4}:{ACC+7}], v7 offset:1024")
    a("s_waitcnt lgkmcnt(0)")
    for i in range(8): a(f"v_add_f32 v{T+i}, v{T+i}, v{ACC+i}")

def tile_soff(a, sd):
    a(f"s_lshl_b32 s{sd}, s{RB7}, 2"); a(f"s_add_u32 s{sd}, s{sd}, s{TT}"); a(f"s_mul_i32 s{sd}, s{sd}, 14")
    a(f"s_lshl_b32 s45, s{CB7}, 1"); a(f"s_add_u32 s{sd}, s{sd}, s45"); a(f"s_add_u32 s{sd}, s{sd}, s{KH}")
    a(f"s_lshl_b32 s{sd}, s{sd}, 10")

def arow_soff(a, sd, nks):
    a(f"s_lshl_b32 s{sd}, s{RB7}, 2"); a(f"s_add_u32 s{sd}, s{sd}, s{TT}"); a(f"s_mul_i32 s{sd}, s{sd}, {nks}")
    a(f"s_mul_i32 s45, s{KH}, {nks//2}"); a(f"s_add_u32 s{sd}, s{sd}, s45")
    a(f"s_lshl_b32 s{sd}, s{sd}, 10")

def unpack_add(a, T, src):
    for i in range(4):
        a(f"v_lshlrev_b32 v8, 16, v{src+i}")
        a(f"v_and_b32 v9, 0xffff0000, v{src+i}")
        a(f"v_add_f32 v{T+2*i}, v{T+2*i}, v8")
        a(f"v_add_f32 v{T+2*i+1}, v{T+2*i+1}, v9")

def round8(a, T):
    for i in range(0, 8, 2):
        a(f"v_cvt_pk_bf16_f32 v{T+i+1}, v{T+i}, v{T+i+1}")
        a(f"v_lshlrev_b32 v{T+i}, 16, v{T+i+1}")
        a(f"v_and_b32 v{T+i+1}, 0xffff0000, v{T+i+1}")

def pack8(a, T, O):
    for i in range(4):
        a(f"v_cvt_pk_bf16_f32 v{O+i}, v{T+2*i}, v{T+2*i+1}")

def stat_exchange(a, s1, s2, ST, idx):
    a(f"s_lshl_b32 s44, s{KH}, 2"); a(f"s_add_u32 s44, s44, s{TT}"); a("s_lshl_b32 s45, s44, 7")
    a("s_xor_b32 s44, s44, 4"); a("s_lshl_b32 s44, s44, 7")
    a(f"s_add_u32 s45, s45, {ST}"); a(f"s_add_u32 s44, s44, {ST}")
    ST = 0
    a("v_lshl_add_u32 v6, v3, 3, s45")
    a("v_lshl_add_u32 v7, v3, 3, s44")
    a(f"ds_write_b64 v6, v[{s1}:{s2}] offset:{ST+idx*1024}")
    a("s_waitcnt lgkmcnt(0)")
    a("s_barrier")
    a(f"ds_read_b64 v[6:7], v7 offset:{ST+idx*1024}")
    a("s_waitcnt lgkmcnt(0)")
    a(f"v_add_f32 v{s1}, v{s1}, v6")
    a(f"v_add_f32 v{s2}, v{s2}, v7")

def dma_ops(a, setup, count, lds_base):
    setup(a)
    a("s_lshl_b32 s46, s46, 10")
    a(f"s_add_u32 s47, s46, {lds_base & 0xffffffff}")
    ops = []
    for i in range(count):
        ops.append(["s_mov_b32 m0, s47", f"buffer_load_dwordx4 v2, s[12:15], s46 offen{SCW} lds", "s_add_u32 s46, s46, 1024", "s_add_u32 s47, s47, 1024"])
    return ops

def ops_w56(a, WP, base):
    def setup(a):
        a(f"s_mul_i32 s44, s{CB7}, 57344")
        srd_soff(a, 12, WS, WP, 44, 57344)
        a("s_mul_i32 s46, s3, 7")
    return dma_ops(a, setup, 7, base)

def ops_k5a(a):
    def setup(a):
        a(f"s_mul_i32 s44, s{C5}, 114688")
        srd_soff(a, 12, WS, WP3, 44, 114688)
        a("s_mul_i32 s46, s3, 11"); a("s_min_u32 s46, s46, 73")
    return dma_ops(a, setup, 11, 57344)

def splitk_gemm7(a, XAr, ACC, WB, wbase, extra=()):
    extra = list(extra)
    a(f"s_mul_i32 s44, s{KH}, 7168")
    if wbase: a(f"s_add_u32 s44, s44, {wbase}")
    a(f"v_add_u32 v8, s44, v2")
    def rd(k, s):
        for nt in range(4):
            a(f"ds_read_b128 v[{WB[s]+4*nt}:{WB[s]+4*nt+3}], v8 offset:{(nt*14+k)*1024}")
    rd(0, 0)
    for k in range(7):
        s = k & 1
        if k < 6:
            rd(k + 1, 1 - s); a("s_waitcnt lgkmcnt(4)")
        else:
            a("s_waitcnt lgkmcnt(0)")
        for nt in range(4):
            c = "0" if k == 0 else f"v[{ACC+4*nt}:{ACC+4*nt+3}]"
            a(f"v_mfma_f32_16x16x32_bf16 v[{ACC+4*nt}:{ACC+4*nt+3}], v[{WB[s]+4*nt}:{WB[s]+4*nt+3}], v[{XAr+4*k}:{XAr+4*k+3}], {c}")
        take = (len(extra) + (6 - k)) // (7 - k)
        for _ in range(take):
            for op in extra.pop(0): a(op)

L_ST, L_RED = 145408, 147456

def sig_rb7(a, arr, **kw):
    a(f"s_lshl_b32 s40, s{RB7}, 3"); a(f"s_add_u32 s40, s40, s{CB7}"); a(f"s_add_u32 s40, s40, {arr}")
    signal(a, 40, **kw)

def k2b(a, layer):
    fl = layer * F_LAYER
    a(f"s_lshr_b32 s40, s{RB7}, 1"); a("s_lshl_b32 s40, s40, 4"); a(f"s_add_u32 s40, s40, {fl+F_O}")
    wait_flags(a, 40, ('n', 16))
    stamp(a, "k2b start")
    srd(a, 8, WS, OB[layer], XBYTES)
    srd(a, 16, WS, XF0 if layer == 0 else XB0, XBYTES)
    srd(a, 20, WS, XA[layer], XBYTES)
    XAr = 16
    arow_soff(a, 44, 14)
    load_frags(a, XAr, 7, 8, 44)
    XT = 60
    tile_soff(a, 41)
    a(f"buffer_load_dwordx4 v[{XT}:{XT+3}], v2, s[16:19], s41 offen{SCA}")
    a("s_waitcnt vmcnt(0)")
    a("s_barrier")
    stamp(a, "loaded")
    ACC = 64
    splitk_gemm7(a, XAr, ACC, [80, 96], 0, ops_w56(a, WP1, 57344))
    T = 16
    half_exchange(a, ACC, L_RED, T)
    round8(a, T)
    unpack_add(a, T, XT)
    pack8(a, T, 24)
    a(f"buffer_store_dwordx4 v[24:27], v2, s[20:23], s41 offen{SCA}")
    sig_rb7(a, fl + F_XA)
    stamp(a, "k2b done")

def k3(a, layer):
    fl = layer * F_LAYER
    a(f"s_lshl_b32 s40, s{RB7}, 3"); a(f"s_add_u32 s40, s40, {fl+F_XA}")
    wait_flags(a, 40, ('n', 7))
    stamp(a, "k3 start")
    srd(a, 8, WS, XA[layer], XBYTES)
    srd(a, 16, WS, XN[layer], XBYTES)
    srd(a, 20, WS, HB[layer], XBYTES)
    XAr = 16
    arow_soff(a, 44, 14)
    a("s_mov_b32 s42, s44")
    load_frags(a, XAr, 7, 8, 44)
    a("s_waitcnt vmcnt(0)")
    stamp(a, "loaded")
    ln_stats(a, XAr, 28, 8, 9, 10, 11)
    stat_exchange(a, 8, 9, L_ST, 0)
    ln_finish(a, XAr, 28, 8, 9, 72)
    a(f"s_mul_i32 s47, s{KH}, 7")
    for k in range(7):
        sk = a.newlabel("k3sk")
        a(f"s_add_u32 s44, s47, {k}"); a("s_lshr_b32 s44, s44, 1"); a(f"s_cmp_lg_u32 s44, s{CB7}"); a(f"s_cbranch_scc1 {sk}")
        a(f"s_add_u32 s44, s42, {k*1024}")
        a(f"buffer_store_dwordx4 v[{XAr+4*k}:{XAr+4*k+3}], v2, s[16:19], s44 offen{SCA}")
        a.label(sk)
    ln_stats(a, XAr, 28, 8, 9, 10, 11)
    stat_exchange(a, 8, 9, L_ST, 1)
    ln_finish(a, XAr, 28, 8, 9, 72)
    stamp(a, "ln2")
    ACC = 64
    splitk_gemm7(a, XAr, ACC, [80, 96], 57344, ops_w56(a, WP2, 0))
    T = 16
    half_exchange(a, ACC, L_RED, T)
    gelu_pairs(a, list(range(T, T + 8)), 32)
    pack8(a, T, 24)
    tile_soff(a, 41)
    bs = a.newlabel("k3bs"); bj = a.newlabel("k3bj")
    a(f"s_and_b32 s42, s{RB7}, 3")
    a(f"s_cmp_eq_u32 s42, s{TT}"); a("s_cselect_b32 s43, 1, 0")
    a("s_add_u32 s44, s42, 1"); a("s_and_b32 s44, s44, 2")
    a("s_cmp_eq_u32 s44, 0"); a("s_cselect_b32 s42, 1, 0")
    a("s_and_b32 s43, s43, s42")
    a("s_cmp_lg_u32 s43, 0"); a(f"s_cbranch_scc1 {bs}")
    a(f"buffer_store_dwordx4 v[24:27], v2, s[20:23], s41 offen")
    a(f"s_branch {bj}")
    a.label(bs)
    a(f"buffer_store_dwordx4 v[24:27], v2, s[20:23], s41 offen sc1")
    a.label(bj)
    a(f"s_lshl_b32 s40, s{RB7}, 3"); a(f"s_add_u32 s40, s40, s{CB7}"); a(f"s_add_u32 s40, s40, {fl+F_H}")
    signal(a, 40, remote_too=42)
    stamp(a, "k3 done")

def k4(a, layer):
    fl = layer * F_LAYER
    a(f"s_lshl_b32 s40, s{RB7}, 3"); a(f"s_add_u32 s40, s40, {fl+F_H-8}")
    wait_flags(a, 40, ('rb3', RB7))
    stamp(a, "k4 start")
    srd(a, 8, WS, HB[layer], XBYTES)
    srd(a, 16, WS, XN[layer], XBYTES)
    srd(a, 20, WS, X1[layer], XBYTES)
    XAr = 16
    a(f"s_lshl_b32 s44, s{RB7}, 6"); a(f"s_lshl_b32 s45, s{TT}, 4"); a("s_add_u32 s44, s44, s45")
    a("v_add_u32 v12, s44, v3")
    a("s_mov_b32 s45, 14336")
    for vo, sh in ((13, -1), (14, 1), (15, -2), (11, 2)):
        a(f"v_add_u32 v10, {sh}, v12")
        a("v_ashrrev_i32 v9, 4, v10")
        a(f"v_mul_lo_u32 v{vo}, v9, s45")
        a("v_and_b32 v10, 15, v10")
        a(f"v_lshl_add_u32 v{vo}, v10, 4, v{vo}")
        a(f"v_lshl_add_u32 v{vo}, v4, 8, v{vo}")
    GL = f"s[{M_GLT2}:{M_GLT2+1}]"
    hi = a.newlabel("k4hi"); jn = a.newlabel("k4jn")
    a(f"s_mul_i32 s44, s{KH}, 7168"); a("s_add_u32 s45, s44, 4096")
    a(f"s_cmp_eq_u32 s{KH}, 1"); a(f"s_cbranch_scc1 {hi}")
    a(f"v_cndmask_b32 v10, v14, v13, {GL}")
    for k in range(7):
        base = 13 if k < 3 else (10 if k == 3 else 14)
        a(f"buffer_load_dwordx4 v[{XAr+4*k}:{XAr+4*k+3}], v{base}, s[8:11], s{44+k//4} offen offset:{(k%4)*1024}{SCA}")
    a(f"s_branch {jn}")
    a.label(hi)
    a(f"v_cndmask_b32 v10, v11, v15, {GL}")
    for k in range(7):
        base = 15 if k < 3 else (10 if k == 3 else 11)
        a(f"buffer_load_dwordx4 v[{XAr+4*k}:{XAr+4*k+3}], v{base}, s[8:11], s{44+k//4} offen offset:{(k%4)*1024}{SCA}")
    a.label(jn)
    XT = 60
    tile_soff(a, 41)
    a(f"buffer_load_dwordx4 v[{XT}:{XT+3}], v2, s[16:19], s41 offen{SCA}")
    a("s_waitcnt vmcnt(0)")
    a("s_barrier")
    stamp(a, "loaded")
    ACC = 64
    splitk_gemm7(a, XAr, ACC, [80, 96], 0, ops_k5a(a))
    T = 16
    half_exchange(a, ACC, L_RED, T)
    round8(a, T)
    unpack_add(a, T, XT)
    pack8(a, T, 24)
    a(f"buffer_store_dwordx4 v[24:27], v2, s[20:23], s41 offen{SCA}")
    sig_rb7(a, fl + F_X1, pre=pre_k5b, npre=3)
    stamp(a, "k4 done")

def k5(a, layer):
    fl = layer * F_LAYER
    a(f"s_lshl_b32 s40, s{RB5}, 4"); a(f"s_add_u32 s40, s40, {fl+F_X1}")
    wait_flags(a, 40, ('rows', 2))
    stamp(a, "k5 start")
    srd(a, 8, WS, X1[layer], XBYTES)
    srd(a, 20, WS, H2[layer], S * F * 2)
    XAr = 16
    a(f"s_lshl_b32 s47, s{RB5}, 3"); a("s_add_u32 s47, s47, s3")
    a("s_mul_i32 s44, s47, 14336")
    load_frags(a, XAr, 14, 8, 44)
    a("s_waitcnt vmcnt(0)")
    stamp(a, "loaded")
    ln_stats(a, XAr, 56, 8, 9, 10, 11)
    ln_finish(a, XAr, 56, 8, 9, 72)
    a("s_barrier")
    stamp(a, "ln")
    a("v_add_u32 v13, 0x20000, v2")
    WB = [84, 116]; ACC = 148
    def rd(ks, s):
        for nt in range(8):
            ad, o = lds_frag(56 + nt * 14 + ks) if nt < 6 else lds_frag((nt - 6) * 14 + ks)
            a(f"ds_read_b128 v[{WB[s]+4*nt}:{WB[s]+4*nt+3}], {ad} offset:{o}")
    rd(0, 0)
    for ks in range(14):
        s = ks & 1
        if ks < 13:
            rd(ks + 1, 1 - s); a("s_waitcnt lgkmcnt(8)")
        else:
            a("s_waitcnt lgkmcnt(0)")
        for nt in range(8):
            c = "0" if ks == 0 else f"v[{ACC+4*nt}:{ACC+4*nt+3}]"
            a(f"v_mfma_f32_16x16x32_bf16 v[{ACC+4*nt}:{ACC+4*nt+3}], v[{WB[s]+4*nt}:{WB[s]+4*nt+3}], v[{XAr+4*ks}:{XAr+4*ks+3}], {c}")
    stamp(a, "mfma")
    gelu_pairs(a, list(range(ACC, ACC + 32)), 32)
    for i in range(16):
        a(f"v_cvt_pk_bf16_f32 v{16+i}, v{ACC+2*i}, v{ACC+2*i+1}")
    a("s_mul_i32 s44, s47, 56"); a(f"s_lshl_b32 s45, s{C5}, 2"); a("s_add_u32 s44, s44, s45"); a("s_lshl_b32 s44, s44, 10")
    for p in range(4):
        a(f"buffer_store_dwordx4 v[{16+4*p}:{19+4*p}], v2, s[20:23], s44 offen offset:{p*1024}{SCA}")
    a(f"s_lshl_b32 s40, s{RB5}, 4"); a(f"s_add_u32 s40, s40, s{C5}"); a(f"s_add_u32 s40, s40, {fl+F_H2}")
    signal(a, 40, pre=pre_k6, npre=16, prebar=True)
    stamp(a, "k5 done")

def k6(a, layer):
    fl = layer * F_LAYER
    a(f"s_lshr_b32 s40, s{RB7}, 1"); a("s_lshl_b32 s40, s40, 4"); a(f"s_add_u32 s40, s40, {fl+F_H2}")
    wait_flags(a, 40, ('n', 14))
    stamp(a, "k6 start")
    LRED = L_RED
    srd(a, 8, WS, H2[layer], S * F * 2)
    srd(a, 16, WS, X1[layer], XBYTES)
    srd(a, 20, WS, XA[layer], XBYTES)
    if layer == 0: srd(a, 24, WS, XB0, XBYTES)
    else: srd(a, 24, OUT, 0, XBYTES)
    k6_setup(a)
    XAr = 16
    arow_soff(a, 43, 56)
    def a_chunk(c):
        a(f"s_add_u32 s44, s43, {c*4096}")
        load_frags(a, XAr + 16 * c, 4, 8, 44)
    a_chunk(0); a_chunk(1)
    XT1, XT2 = 176, 180
    tile_soff(a, 41)
    a(f"buffer_load_dwordx4 v[{XT1}:{XT1+3}], v2, s[16:19], s41 offen{SCA}")
    a(f"buffer_load_dwordx4 v[{XT2}:{XT2+3}], v2, s[20:23], s41 offen{SCA}")
    if layer == 0: stamp(a, "k6 issued")
    ACC = 128; WB = [144, 160]
    a(f"s_lshl_b32 s44, s{KH}, 12")
    a("v_add_u32 v8, s44, v2")
    a(f"v_add_u32 v9, {2*SLOT}, v8")
    for c in range(7):
        if c + 2 <= 6: a_chunk(c + 2)
        seq = ["A0", "A1", "X"]
        for cc in range(c + 1):
            if cc + 2 <= 6: seq.append(f"A{cc+2}")
            if 1 <= cc <= 3 and cc < c: seq.append(f"W{cc+3}")
        need = max(seq.index(f"A{c}"), seq.index(f"W{c}") if c >= 4 else -1)
        allowed = sum(2 if x == "X" else 4 for x in seq[need + 1:])
        a(f"s_waitcnt vmcnt({allowed})")
        a("s_barrier")
        if 1 <= c <= 3: k6_chunk(a, c + 3)
        if layer == 0: stamp(a, f"k6 c{c} ready")
        vb = "v8" if (c & 3) < 2 else "v9"
        so = (c & 1) * SLOT
        def rd(k, s):
            for nt in range(4):
                a(f"ds_read_b128 v[{WB[s]+4*nt}:{WB[s]+4*nt+3}], {vb} offset:{so+nt*8192+k*1024}")
        rd(0, 0)
        for k in range(4):
            s_ = k & 1
            if k < 3:
                rd(k + 1, 1 - s_); a("s_waitcnt lgkmcnt(4)")
            else:
                a("s_waitcnt lgkmcnt(0)")
            kk = c * 4 + k
            for nt in range(4):
                cc = "0" if kk == 0 else f"v[{ACC+4*nt}:{ACC+4*nt+3}]"
                a(f"v_mfma_f32_16x16x32_bf16 v[{ACC+4*nt}:{ACC+4*nt+3}], v[{WB[s_]+4*nt}:{WB[s_]+4*nt+3}], v[{XAr+4*kk}:{XAr+4*kk+3}], {cc}")
    stamp(a, "mfma")
    T = 16
    half_exchange(a, ACC, LRED, T)
    round8(a, T)
    unpack_add(a, T, XT1)
    round8(a, T)
    unpack_add(a, T, XT2)
    pack8(a, T, 24)
    if layer == 0:
        a(f"buffer_store_dwordx4 v[24:27], v2, s[24:27], s41 offen{SCA}")
        sig_rb7(a, fl + F_XB, pre=pre_k1, npre=9)
    else:
        a(f"s_lshl_b32 s44, s{RB7}, 6"); a(f"s_lshl_b32 s45, s{TT}, 4"); a("s_add_u32 s44, s44, s45")
        a("v_add_u32 v12, s44, v3")
        a("v_mul_u32_u24 v12, 896, v12")
        a("v_lshl_add_u32 v12, v4, 4, v12")
        a(f"s_lshl_b32 s44, s{CB7}, 7"); a(f"s_lshl_b32 s45, s{KH}, 6"); a("s_add_u32 s44, s44, s45")
        a("buffer_store_dwordx4 v[24:27], v12, s[24:27], s44 offen")
    stamp(a, "k6 done")

def l2_prefetch(a, first_frag, nfrag, widx_s, nw):
    lp = a.newlabel("pf"); dn = a.newlabel("pfd")
    srd(a, 12, WS, first_frag * 1024, nfrag * 1024)
    a(f"s_lshl_b32 s44, s{widx_s}, 12")
    a.label(lp)
    a(f"s_cmp_ge_u32 s44, {nfrag*1024}"); a(f"s_cbranch_scc1 {dn}")
    for rep in range(2):
        for k in range(4):
            a(f"buffer_load_dwordx4 v[{16+16*rep+4*k}:{19+16*rep+4*k}], v2, s[12:15], s44 offen offset:{k*1024}")
        a(f"s_add_u32 s44, s44, {nw*4096}")
    a("s_waitcnt vmcnt(4)")
    a(f"s_branch {lp}")
    a.label(dn)
    a("s_waitcnt vmcnt(0)")

def build():
    stamp_idx[0] = 0; STAMP_NAMES.clear()
    a = Asm()
    done = "L_done"
    a("s_cmp_ge_u32 s2, 256"); a(f"s_cbranch_scc1 {done}")
    a(f"s_load_dwordx2 s[{AX}:{AX+1}], s[0:1], 0")
    a(f"s_load_dwordx2 s[{OUT}:{OUT+1}], s[0:1], 72")
    a(f"s_load_dwordx2 s[{DBG}:{DBG+1}], s[0:1], 80")
    a(f"s_load_dwordx2 s[{WS}:{WS+1}], s[0:1], 88")
    a("v_and_b32 v1, 63, v0")
    a("v_lshrrev_b32 v2, 6, v0")
    a("v_readfirstlane_b32 s3, v2")
    a("v_lshlrev_b32 v2, 4, v1")
    a("v_and_b32 v3, 15, v1")
    a("v_lshrrev_b32 v4, 4, v1")
    a("v_add_u32 v5, 0x10000, v2")
    a(f"v_cmp_eq_u32 s[{M_G3}:{M_G3+1}], 3, v4")
    a(f"v_cmp_le_u32 s[{M_M12GE}:{M_M12GE+1}], 12, v3")
    a(f"v_cmp_eq_u32 s[{M_M12}:{M_M12+1}], 12, v3")
    a(f"v_cmp_gt_u32 s[{M_GLT2}:{M_GLT2+1}], 2, v4")
    a(f"s_mov_b32 s{ONES}, 0x3f803f80")
    a(f"s_mov_b32 s{L2E}, {f2u(LOG2E):#x}")
    a(f"s_mov_b32 s90, {f2u(0.044715):#x}")
    a(f"s_mov_b32 s91, {f2u(-2.0 * 0.7978845608028654 * LOG2E):#x}")
    a("s_waitcnt lgkmcnt(0)")
    stamp(a, "begin"); gstamp(a, 0)
    prep(a)
    stamp(a, "prep done"); gstamp(a, 2)
    a(f"s_mov_b32 s44, {magic(7)}")
    a(f"s_lshr_b32 s45, s{VWG}, 3")
    a(f"s_mul_hi_u32 s{RB7}, s45, s44")
    a(f"s_mul_i32 s{CB7}, s{RB7}, 7")
    a(f"s_sub_u32 s{CB7}, s45, s{CB7}")
    a(f"s_and_b32 s45, s{VWG}, 7"); a("s_lshl_b32 s45, s45, 2")
    a(f"s_add_u32 s{RB7}, s{RB7}, s45")
    a(f"s_and_b32 s{RB16}, s{VWG}, 7"); a(f"s_lshl_b32 s{RB16}, s{RB16}, 1")
    a(f"s_lshr_b32 s45, s{VWG}, 7"); a(f"s_add_u32 s{RB16}, s{RB16}, s45")
    a(f"s_lshr_b32 s{C16}, s{VWG}, 3"); a(f"s_and_b32 s{C16}, s{C16}, 15")
    a(f"s_and_b32 s{TT}, s3, 3"); a(f"s_lshr_b32 s{KH}, s3, 2")
    a(f"s_mov_b32 s44, {magic(14)}")
    a(f"s_lshr_b32 s45, s{VWG}, 3")
    a(f"s_mul_hi_u32 s{RB5}, s45, s44")
    a(f"s_mul_i32 s{C5}, s{RB5}, 14")
    a(f"s_sub_u32 s{C5}, s45, s{C5}")
    a(f"s_and_b32 s45, s{VWG}, 7"); a("s_lshl_b32 s45, s45, 1")
    a(f"s_add_u32 s{RB5}, s{RB5}, s45")
    pre_k1(a)
    for layer in range(2):
        k1(a, layer)
        idle = a.newlabel("idle"); idle2 = a.newlabel("idle2"); j = a.newlabel("join")
        a(f"s_cmp_ge_u32 s{VWG}, 224"); a(f"s_cbranch_scc1 {idle}")
        k2b(a, layer)
        k3(a, layer)
        k4(a, layer)
        k5(a, layer)
        k6(a, layer)
        if layer == 0:
            a(f"s_branch {j}")
            a.label(idle)
            a(f"s_sub_u32 s40, s{VWG}, 224"); a("s_lshr_b32 s40, s40, 3"); a("s_lshl_b32 s40, s40, 3"); a("s_add_u32 s40, s40, s3")
            l2_prefetch(a, WPO // 1024, (XF0 - WPO) // 1024, 40, 32)
            l2_prefetch(a, 0, 1376, 40, 32)
            pre_k1(a)
            a.label(j)
        else:
            a(f"s_branch {done}")
            a.label(idle)
            a(f"s_sub_u32 s40, s{VWG}, 224"); a("s_lshr_b32 s40, s40, 3"); a("s_lshl_b32 s40, s40, 3"); a("s_add_u32 s40, s40, s3")
            l2_prefetch(a, WPO // 1024, (XF0 - WPO) // 1024, 40, 32)
    a.label(done)
    a("s_endpgm")
    body = fix_hazards(a.lines)
    import re as _re
    for l in body:
        m = _re.search(r"buffer_\S+ .*offset:(\d+)", l)
        assert not m or int(m.group(1)) < 4096, l
    hdr = open("cdna_kernels/" + NAME + ".s.ref").read().split("; Override launch")[0]
    kname = NAME + "_kernel"
    nv = 256 if STAMP else 248
    return hdr + f"""; @launch grid=(256,1,1) block=(512,1,1) lds=163840
.amdgcn_target "amdgcn-amd-amdhsa--gfx950"
.text
.globl {kname}
.p2align 8
.type {kname},@function
{kname}:
""" + "\n".join(body) + f"""
.section .rodata,"a"
.p2align 6
.amdhsa_kernel {kname}
  .amdhsa_next_free_vgpr {nv}
  .amdhsa_next_free_sgpr 102
  .amdhsa_accum_offset {nv}
  .amdhsa_group_segment_fixed_size 0
  .amdhsa_kernarg_size 96
  .amdhsa_user_sgpr_count 2
  .amdhsa_user_sgpr_kernarg_segment_ptr 1
  .amdhsa_system_sgpr_workgroup_id_x 1
.end_amdhsa_kernel
"""

if __name__ == "__main__":
    out = sys.argv[1]
    if "stamp" in sys.argv[2:]:
        STAMP = True
    if "fallback" in sys.argv[2:]:
        FORCE_FALLBACK = True
    open(out, "w").write(build())
    if STAMP:
        open(out + ".names", "w").write("\n".join(STAMP_NAMES))
    print("ws used", WS_USED)
```

```python
import sys
from asmlib import *
import struct

NAME = "interleave_layers__linear_kernel_hedgehog__mixer_s_mlp__prompt"
S, D, F, H, DH = 2048, 448, 1792, 16, 28
XBYTES = S * D * 2
off = 0
def region(n):
    global off
    o = off; off += (n + 255) // 256 * 256; return o
HEADW = 86 * 1024
WPQKV = region(16 * HEADW)
WPO = region(28 * 14 * 1024)
WP1 = region(28 * 14 * 1024)
WP2 = region(28 * 14 * 1024)
WP3 = region(112 * 14 * 1024)
WP4 = region(28 * 56 * 1024)
XF0 = region(128 * 14 * 1024)
NFRAG = off // 1024
KVACC = [region(16 * 8192) for _ in range(2)]
FLG = region(16384)
ZERO_BYTES = 2 * 131072 + 16384
assert FLG == KVACC[0] + 262144
OB = [region(XBYTES) for _ in range(2)]
XA = [region(XBYTES) for _ in range(2)]
XN = [region(XBYTES) for _ in range(2)]
HB = [region(XBYTES) for _ in range(2)]
X1 = [region(XBYTES) for _ in range(2)]
H2 = [region(S * F * 2) for _ in range(2)]
XB0 = region(XBYTES)
PBAR = region(2048)
STAMPS = region(65536)
WS_USED = off
F_KV, F_O, F_XA, F_H, F_X1, F_H2, F_XB, F_HR, F_LAYER = 0, 256, 512, 768, 1024, 1280, 1536, 1792, 2048
MODE, VWG = 80, 81
FORCE_FALLBACK = False
NOPF = False

LOG2E = 1.4426950408889634
def f2u(x): return struct.unpack("<I", struct.pack("<f", x))[0]

WS, AX, OUT, DBG = 94, 96, 98, 92
RB7, CB7, RB16, C16, TT, KH = 84, 85, 86, 87, 88, 89
RB5, C5 = 82, 83
M_G3, M_M12GE, M_M12, M_GLT2 = 52, 54, 56, 58
ONES, L2E = 60, 61
SC = " sc1"
SCA = ""
SCW = ""
SPIN_MAX = 1 << 16

STAMP = False
stamp_idx = [0]
def stamp(a, name=""):
    if not STAMP: return
    i = stamp_idx[0]; stamp_idx[0] += 1
    sk = a.newlabel("st")
    a("s_memtime s[74:75]")
    a("s_cmp_lg_u32 s2, 5"); a(f"s_cbranch_scc1 {sk}")
    a("s_waitcnt lgkmcnt(0)")
    srd(a, 76, WS, STAMPS, 65536)
    a("s_lshl_b32 s75, s3, 2")
    a("v_mov_b32 v250, s74"); a("v_mov_b32 v251, s75")
    a(f"buffer_store_dword v250, v251, s[76:79], 0 offen offset:{i*32}")
    a.label(sk)
    STAMP_NAMES.append(name)
STAMP_NAMES = []
def gstamp(a, slot):
    if not STAMP: return
    sk = a.newlabel("gst")
    a("s_cmp_lg_u32 s3, 0"); a(f"s_cbranch_scc1 {sk}")
    a("s_memrealtime s[74:75]")
    a("s_waitcnt lgkmcnt(0)")
    srd(a, 76, WS, STAMPS + 32768, 32768)
    a("s_lshl_b32 s75, s2, 2")
    a("v_mov_b32 v250, s74"); a("v_mov_b32 v251, s75")
    a(f"buffer_store_dword v250, v251, s[76:79], 0 offen offset:{slot*1024}")
    a.label(sk)

def srd(a, d, base, offset, size):
    if offset:
        a(f"s_add_u32 s{d}, s{base}, {offset}")
        a(f"s_addc_u32 s{d+1}, s{base+1}, 0")
    else:
        a(f"s_mov_b32 s{d}, s{base}")
        a(f"s_mov_b32 s{d+1}, s{base+1}")
    a(f"s_mov_b32 s{d+2}, {size}")
    a(f"s_mov_b32 s{d+3}, 0x00020000")

def srd_soff(a, d, base, offset, soff, size):
    a(f"s_add_u32 s{d}, s{base}, s{soff}")
    a(f"s_addc_u32 s{d+1}, s{base+1}, 0")
    if offset:
        a(f"s_add_u32 s{d}, s{d}, {offset}")
        a(f"s_addc_u32 s{d+1}, s{d+1}, 0")
    a(f"s_mov_b32 s{d+2}, {size}")
    a(f"s_mov_b32 s{d+3}, 0x00020000")

def lds_frag(idx):
    if idx < 64: return ("v2", idx * 1024)
    if idx < 128: return ("v5", (idx - 64) * 1024)
    assert idx < 160
    return ("v13", (idx - 128) * 1024)

def allred_groups(a, op, r, t):
    a(f"v_mov_b32 v{t}, v{r}")
    a(f"v_permlane32_swap_b32 v{r}, v{t}")
    a(f"{op} v{r}, v{r}, v{t}")
    a(f"v_mov_b32 v{t}, v{r}")
    a(f"v_permlane16_swap_b32 v{r}, v{t}")
    a(f"{op} v{r}, v{r}, v{t}")

def allred_row16(a, op, regs):
    for rot in (8, 4, 2, 1):
        for r in regs:
            a(f"{op}_dpp v{r}, v{r}, v{r} row_ror:{rot} row_mask:0xf bank_mask:0xf")

def bf16_round(a, r):
    a(f"v_cvt_pk_bf16_f32 v{r}, v{r}, v{r}")
    a(f"v_and_b32 v{r}, 0xffff0000, v{r}")

def ln_stats(a, xa, n, s1, s2, s1b, s2b):
    a(f"v_mov_b32 v{s1}, 0"); a(f"v_mov_b32 v{s2}, 0"); a(f"v_mov_b32 v{s1b}, 0"); a(f"v_mov_b32 v{s2b}, 0")
    for i in range(n):
        d1, d2 = (s1, s2) if i % 2 == 0 else (s1b, s2b)
        a(f"v_dot2_f32_bf16 v{d1}, v{xa+i}, s{ONES}, v{d1}")
        a(f"v_dot2_f32_bf16 v{d2}, v{xa+i}, v{xa+i}, v{d2}")
    a(f"v_add_f32 v{s1}, v{s1}, v{s1b}")
    a(f"v_add_f32 v{s2}, v{s2}, v{s2b}")
    allred_groups(a, "v_add_f32", s1, s1b)
    allred_groups(a, "v_add_f32", s2, s2b)

def ln_finish(a, xa, n, s1, s2, tp, ntp=4):
    R, M = tp, tp + 2
    a(f"v_mul_f32 v{s1}, {f2u(1.0/448):#x}, v{s1}")
    a(f"v_mul_f32 v{s2}, {f2u(1.0/448):#x}, v{s2}")
    a(f"v_fma_f32 v{s2}, -v{s1}, v{s1}, v{s2}")
    a(f"v_max_f32 v{s2}, 0, v{s2}")
    bf16_round(a, s1)
    bf16_round(a, s2)
    a(f"v_add_f32 v{s2}, {f2u(1e-5):#x}, v{s2}")
    bf16_round(a, s2)
    a(f"v_sqrt_f32 v{s2}, v{s2}")
    bf16_round(a, s2)
    a(f"v_rcp_f32 v{R}, v{s2}")
    a(f"v_mul_f32 v{M}, v{s1}, v{R}")
    a(f"v_sub_f32 v{M}, 0, v{M}")
    for i in range(n):
        t = tp + 4 + 2 * (i % ntp)
        a(f"v_lshlrev_b32 v{t}, 16, v{xa+i}")
        a(f"v_and_b32 v{t+1}, 0xffff0000, v{xa+i}")
        a(f"v_pk_fma_f32 v[{t}:{t+1}], v[{t}:{t+1}], v[{R}:{R+1}], v[{M}:{M+1}] op_sel_hi:[1,0,0]")
        a(f"v_cvt_pk_bf16_f32 v{xa+i}, v{t}, v{t+1}")

def gelu_pairs(a, regs, tmp):
    n = len(regs)
    for i in range(0, n, 2):
        r0, r1 = regs[i], regs[i + 1]
        a(f"v_cvt_pk_bf16_f32 v{r1}, v{r0}, v{r1}")
        a(f"v_lshlrev_b32 v{r0}, 16, v{r1}")
        a(f"v_and_b32 v{r1}, 0xffff0000, v{r1}")
    for base in range(0, n, 4):
        grp = regs[base:base + 4]
        for k, r in enumerate(grp): a(f"v_mul_f32 v{tmp+k}, v{r}, v{r}")
        for k, r in enumerate(grp): a(f"v_fma_f32 v{tmp+k}, v{tmp+k}, s90, 1.0")
        for k, r in enumerate(grp): a(f"v_mul_f32 v{tmp+k}, v{tmp+k}, v{r}")
        for k, r in enumerate(grp): a(f"v_mul_f32 v{tmp+k}, s91, v{tmp+k}")
        for k, r in enumerate(grp): a(f"v_exp_f32 v{tmp+k}, v{tmp+k}")
        for k, r in enumerate(grp): a(f"v_add_f32 v{tmp+k}, 1.0, v{tmp+k}")
        for k, r in enumerate(grp): a(f"v_rcp_f32 v{tmp+k}, v{tmp+k}")
        for k, r in enumerate(grp): a(f"v_mul_f32 v{r}, v{r}, v{tmp+k}")

def dma_frags(a, srdW, first_s, count, lds_base, tmp_s):
    a(f"s_lshl_b32 s{tmp_s}, s{first_s}, 10")
    a(f"s_add_u32 s{tmp_s+1}, s{tmp_s}, {lds_base & 0xffffffff}")
    i = 0
    while i < count:
        a(f"s_mov_b32 m0, s{tmp_s+1}")
        for k in range(min(4, count - i)):
            a(f"buffer_load_dwordx4 v2, s[{srdW}:{srdW+3}], s{tmp_s} offen offset:{k*1024}{SCW} lds")
        i += 4
        if i < count:
            a(f"s_add_u32 s{tmp_s}, s{tmp_s}, 4096")
            a(f"s_add_u32 s{tmp_s+1}, s{tmp_s+1}, 4096")

def flag_srd(a):
    srd(a, 28, WS, FLG, 16384)

def signal(a, idx_s, local=True, remote_too=None, pre=None, npre=0, prebar=False):
    sk = a.newlabel("sig"); fb = a.newlabel("sigfb"); jn = a.newlabel("sigj")
    a(f"s_waitcnt vmcnt(0)")
    a("s_barrier")
    a("s_cmp_lg_u32 s3, 0"); a(f"s_cbranch_scc1 {sk}")
    flag_srd(a)
    a(f"s_lshl_b32 s48, s{idx_s}, 2")
    a("v_mov_b32 v6, 1"); a("v_mov_b32 v7, s48")
    a("s_mov_b64 exec, 1")
    if local:
        a(f"s_cmp_lg_u32 s{MODE}, 0"); a(f"s_cbranch_scc1 {fb}")
        a(f"buffer_store_dword v6, v7, s[28:31], 0 offen")
        a(f"s_branch {jn}")
        a.label(fb)
        a("buffer_wbl2 sc1")
        a("s_waitcnt vmcnt(0)")
        a(f"buffer_store_dword v6, v7, s[28:31], 0 offen sc1")
        a.label(jn)
    else:
        a(f"buffer_store_dword v6, v7, s[28:31], 0 offen sc1")
    if remote_too is not None:
        nr = a.newlabel("signr")
        a(f"s_cmp_eq_u32 s{remote_too}, 0"); a(f"s_cbranch_scc1 {nr}")
        a(f"v_add_u32 v7, {(F_HR-F_H)*4}, v7")
        a(f"buffer_store_dword v6, v7, s[28:31], 0 offen sc1")
        a.label(nr)
    a("s_mov_b64 exec, -1")
    a.label(sk)
    if pre is not None: pre(a)

def wait_flags(a, base_s, mode):
    sk = a.newlabel("wsk"); lp = a.newlabel("wlp"); dn = a.newlabel("wdn")
    a("s_cmp_lg_u32 s3, 0"); a(f"s_cbranch_scc1 {sk}")
    flag_srd(a)
    a("s_mov_b32 s50, 0")
    if mode[0] == 'x4':
        a(f"s_lshl_b32 s48, s{base_s}, 2")
        a("v_add_u32 v6, s48, v2")
        a.label(lp)
        a(f"buffer_load_dwordx4 v[8:11], v6, s[28:31], 0 offen{SC}")
        a("s_waitcnt vmcnt(0)")
        a("v_min_u32 v8, v8, v9"); a("v_min_u32 v10, v10, v11"); a("v_min_u32 v8, v8, v10")
        a("v_cmp_ne_u32 vcc, 0, v8")
        a("s_cmp_eq_u64 vcc, -1"); a(f"s_cbranch_scc1 {dn}")
    else:
        a(f"v_add_u32 v6, s{base_s}, v1")
        if mode[0] == 'n':
            a(f"v_cmp_le_u32 s[48:49], {mode[1]}, v1")
        elif mode[0] == 'rows':
            a("v_and_b32 v7, 7, v1")
            a("v_cmp_eq_u32 s[48:49], 7, v7")
            a(f"v_cmp_le_u32 vcc, {mode[1]*8}, v1")
            a("s_or_b64 s[48:49], s[48:49], vcc")
        elif mode[0] == 'rb3':
            a("v_and_b32 v7, 7, v1")
            a("v_cmp_eq_u32 s[48:49], 7, v7")
            a("v_cmp_le_u32 vcc, 24, v1")
            a("s_or_b64 s[48:49], s[48:49], vcc")
            a("v_lshrrev_b32 v7, 3, v1")
            a(f"v_add_u32 v7, s{mode[1]}, v7")
            a("v_cmp_eq_u32 vcc, 0, v7")
            a("s_or_b64 s[48:49], s[48:49], vcc")
            a("v_cmp_lt_u32 vcc, 32, v7")
            a("s_or_b64 s[48:49], s[48:49], vcc")
            a(f"s_and_b32 s51, s{mode[1]}, 3")
            a("s_cmp_eq_u32 s51, 0"); a(f"s_cselect_b32 s45, {F_HR-F_H}, 0")
            a("s_cmp_eq_u32 s51, 3"); a(f"s_cselect_b32 s51, {F_HR-F_H}, 0")
            a("v_cmp_gt_u32 vcc, 8, v1"); a("v_mov_b32 v7, s45"); a("v_cndmask_b32 v7, 0, v7, vcc"); a("v_add_u32 v6, v6, v7")
            a("v_cmp_le_u32 vcc, 16, v1"); a("v_mov_b32 v7, s51"); a("v_cndmask_b32 v7, 0, v7, vcc"); a("v_add_u32 v6, v6, v7")
        a("v_lshlrev_b32 v6, 2, v6")
        a("v_cndmask_b32 v6, v6, 0, s[48:49]")
        a.label(lp)
        a(f"buffer_load_dword v8, v6, s[28:31], 0 offen{SC}")
        a("s_waitcnt vmcnt(0)")
        a("v_cmp_ne_u32 vcc, 0, v8")
        a("s_or_b64 vcc, vcc, s[48:49]")
        a("s_cmp_eq_u64 vcc, -1"); a(f"s_cbranch_scc1 {dn}")
    a("s_sleep 1")
    a("s_add_u32 s50, s50, 1")
    a(f"s_cmp_lt_u32 s50, {SPIN_MAX}"); a(f"s_cbranch_scc1 {lp}")
    a.label(dn)
    a(f"s_cmp_eq_u32 s{MODE}, 0"); a(f"s_cbranch_scc1 {sk}")
    a("buffer_inv sc1")
    a("s_waitcnt vmcnt(0)")
    a.label(sk)
    a("s_barrier")

def pre_k1(a):
    a(f"s_mul_i32 s42, s{C16}, {HEADW}")
    srd_soff(a, 12, WS, WPQKV, 42, HEADW)
    a("s_mul_i32 s43, s3, 11")
    skip = a.newlabel("k1skip")
    dma_frags(a, 12, 43, 9, 0, 44)
    a("s_cmp_eq_u32 s3, 7"); a(f"s_cbranch_scc1 {skip}")
    a("s_add_u32 s43, s43, 9")
    dma_frags(a, 12, 43, 2, 0, 44)
    a.label(skip)

def pre_w56(a, WP, base):
    a(f"s_mul_i32 s44, s{CB7}, 57344")
    srd_soff(a, 12, WS, WP, 44, 57344)
    a("s_mul_i32 s46, s3, 7")
    dma_frags(a, 12, 46, 7, base, 44)

def pre_k5a(a):
    a(f"s_mul_i32 s44, s{C5}, 114688")
    srd_soff(a, 12, WS, WP3, 44, 114688)
    sk = a.newlabel("k5a")
    a("s_mul_i32 s46, s3, 11"); a("s_cmp_eq_u32 s3, 7"); a("s_cselect_b32 s46, 75, s46")
    dma_frags(a, 12, 46, 9, 57344, 44)
    a("s_cmp_ge_u32 s3, 6"); a(f"s_cbranch_scc1 {sk}")
    a("s_add_u32 s46, s46, 9")
    dma_frags(a, 12, 46, 2, 57344, 44)
    a.label(sk)
def pre_k5b(a):
    sk = a.newlabel("k5b")
    a(f"s_mul_i32 s44, s{C5}, 114688")
    srd_soff(a, 12, WS, WP3, 44, 114688)
    a("s_mul_i32 s46, s3, 3"); a("s_min_u32 s47, s3, 4"); a("s_add_u32 s46, s46, s47"); a("s_add_u32 s46, s46, 84")
    dma_frags(a, 12, 46, 3, -84 * 1024, 44)
    a("s_cmp_ge_u32 s3, 4"); a(f"s_cbranch_scc1 {sk}")
    a("s_add_u32 s46, s46, 3")
    dma_frags(a, 12, 46, 1, -84 * 1024, 44)
    a.label(sk)

SLOT = 32768
def k6_setup(a):
    a(f"s_mul_i32 s44, s{CB7}, 229376")
    srd_soff(a, 12, WS, WP4, 44, 229376)
    a("s_lshr_b32 s44, s3, 1"); a("s_and_b32 s45, s3, 1")
    a("s_mul_i32 s46, s44, 56"); a("s_mul_i32 s47, s45, 28"); a("s_add_u32 s46, s46, s47"); a("s_lshl_b32 s46, s46, 10")
    a("s_lshl_b32 s47, s3, 12")
def k6_chunk(a, c):
    a(f"s_add_u32 s44, s46, {c*4096}")
    a(f"s_add_u32 s45, s47, {(c&3)*SLOT}")
    a("s_mov_b32 m0, s45")
    for k in range(4):
        a(f"buffer_load_dwordx4 v2, s[12:15], s44 offen offset:{k*1024}{SCW} lds")
def pre_k6(a):
    k6_setup(a)
    for c in range(4): k6_chunk(a, c)

b_o = 1376; b_1 = b_o + 392; b_2 = b_1 + 392; b_3 = b_2 + 392; b_4 = b_3 + 1568
b_x = b_4 + 1568
assert b_x + 1792 == NFRAG
w_phi0 = 14 * 96
def prep_part(a, part, nit, stride, start=0):
    a("s_load_dwordx4 s[4:7], s[0:1], 8")
    a("s_load_dwordx2 s[36:37], s[0:1], 24")
    a("s_load_dwordx4 s[40:43], s[0:1], 40")
    a("s_load_dwordx4 s[44:47], s[0:1], 56")
    srd(a, 8, WS, 0, NFRAG * 1024)
    a("v_lshrrev_b32 v6, 2, v3"); a("v_and_b32 v7, 3, v3")
    a("v_lshl_add_u32 v8, v6, 3, v7")
    a("v_mov_b32 v15, 0x40000000")
    a("s_waitcnt lgkmcnt(0)")
    for it in range(nit):
        R = 32 + it * 8
        DS = 76 + it
        a(f"s_add_u32 s50, s49, {start + stride*it}")
        if part == 0:
            pass
        elif part == 1:
            a(f"s_cmp_ge_u32 s50, 1376"); a(f"s_cselect_b32 s62, {b_x-1376}, 0"); a("s_add_u32 s50, s50, s62")
        elif part == 2:
            a(f"s_add_u32 s50, s50, {b_o}"); a(f"s_cmp_ge_u32 s50, {b_3}"); a(f"s_cselect_b32 s50, {NFRAG}, s50")
        else:
            a(f"s_add_u32 s50, s50, {b_3}"); a(f"s_cmp_ge_u32 s50, {b_x}"); a(f"s_cselect_b32 s50, {NFRAG}, s50")
        a(f"s_mov_b32 s{32+it}, s50")
        std = a.newlabel("k0std"); perm = a.newlabel("k0perm"); nxt = a.newlabel("k0nxt")
        t_o, t_1, t_2, t_3, t_4, t_phi, t_x, colgen = [a.newlabel("k0t") for _ in range(8)]
        a(f"s_cmp_ge_u32 s50, {NFRAG}"); a(f"s_cbranch_scc1 {nxt}")
        a(f"s_cmp_ge_u32 s50, {b_x}"); a(f"s_cbranch_scc1 {t_x}")
        a(f"s_cmp_ge_u32 s50, {b_4}"); a(f"s_cbranch_scc1 {t_4}")
        a(f"s_cmp_ge_u32 s50, {b_3}"); a(f"s_cbranch_scc1 {t_3}")
        a(f"s_cmp_ge_u32 s50, {b_2}"); a(f"s_cbranch_scc1 {t_2}")
        a(f"s_cmp_ge_u32 s50, {b_1}"); a(f"s_cbranch_scc1 {t_1}")
        a(f"s_cmp_ge_u32 s50, {b_o}"); a(f"s_cbranch_scc1 {t_o}")
        a(f"s_cmp_ge_u32 s50, {w_phi0}"); a(f"s_cbranch_scc1 {t_phi}")
        a(f"s_mov_b32 s62, {magic(96)}")
        a("s_mul_hi_u32 s66, s50, s62")
        a("s_mul_i32 s64, s66, 96")
        a("s_sub_u32 s64, s50, s64")
        a("s_lshr_b32 s67, s64, 5")
        a("s_bfe_u32 s63, s64, 0x40001")
        a("s_and_b32 s68, s64, 1")
        a("s_lshl_b32 s65, s67, 1"); a("s_add_u32 s65, s65, s68"); a("s_mul_i32 s65, s65, 14"); a("s_add_u32 s65, s65, s66")
        a(f"s_mul_i32 s{DS}, s63, 86"); a(f"s_add_u32 s{DS}, s{DS}, s65")
        a("s_mul_i32 s67, s67, 448")
        a("s_mul_i32 s69, s63, 28")
        a("s_add_u32 s67, s67, s69")
        a("s_lshl_b32 s69, s68, 4")
        a("s_add_u32 s67, s67, s69")
        srd(a, 12, 4, 0, 448 * 1344 * 2)
        a("s_mov_b32 s70, 2688")
        a("s_mul_i32 s71, s66, 32*2688")
        a("v_add_u32 v10, s67, v3")
        a("v_lshlrev_b32 v10, 1, v10")
        a("v_mul_u32_u24 v11, 8*2688, v4")
        a("v_add_u32 v10, v10, v11")
        a("s_cmp_eq_u32 s68, 0"); a(f"s_cbranch_scc1 {std}")
        a(f"v_cndmask_b32 v10, v10, v15, s[{M_M12GE}:{M_M12GE+1}]")
        a(f"s_branch {std}")
        a.label(t_phi)
        a(f"s_sub_u32 s64, s50, {w_phi0}")
        a("s_lshr_b32 s63, s64, 1"); a("s_and_b32 s68, s64, 1")
        a(f"s_mul_i32 s{DS}, s63, 86"); a(f"s_add_u32 s{DS}, s{DS}, s68"); a(f"s_add_u32 s{DS}, s{DS}, 84")
        srd(a, 12, 6, 0, 16 * 784 * 2)
        a("s_mov_b32 s70, 56")
        a("s_mul_i32 s71, s63, 1568")
        a("s_lshl_b32 s69, s68, 4")
        a("v_add_u32 v10, s69, v3")
        a("v_lshlrev_b32 v10, 1, v10")
        a("v_mul_u32_u24 v11, 4*56, v4")
        a("v_add_u32 v10, v10, v11")
        a("s_cmp_eq_u32 s68, 0"); a(f"s_cbranch_scc1 {perm}")
        a(f"v_cndmask_b32 v10, v10, v15, s[{M_M12GE}:{M_M12GE+1}]")
        a(f"s_branch {perm}")
        for lab, b, ptr, KS, sz in ((t_o, b_o, 36, 14, 448*448*2), (t_1, b_1, 40, 14, 448*448*2), (t_2, b_2, 42, 14, 448*448*2), (t_4, b_4, 46, 56, 1792*448*2)):
            a.label(lab)
            a(f"s_sub_u32 s64, s50, {b}")
            a(f"s_mov_b32 s62, {magic(28)}")
            a("s_mul_hi_u32 s66, s64, s62")
            a("s_mul_i32 s65, s66, 28")
            a("s_sub_u32 s65, s64, s65")
            a(f"s_mul_i32 s{DS}, s65, {KS}"); a(f"s_add_u32 s{DS}, s{DS}, s66"); a(f"s_add_u32 s{DS}, s{DS}, {b}")
            srd(a, 12, ptr, 0, sz)
            a(f"s_branch {colgen}")
        a.label(colgen)
        a("s_mov_b32 s70, 896")
        a("s_mul_i32 s71, s66, 32*896")
        a("s_lshr_b32 s67, s65, 1"); a("s_lshl_b32 s67, s67, 5")
        a("s_and_b32 s68, s65, 1"); a("s_lshl_b32 s68, s68, 2")
        a("s_add_u32 s67, s67, s68")
        a("v_add_u32 v10, s67, v8")
        a("v_lshlrev_b32 v10, 1, v10")
        a("v_mul_u32_u24 v11, 8*896, v4")
        a("v_add_u32 v10, v10, v11")
        a(f"s_branch {std}")
        a.label(t_x)
        a(f"s_mov_b32 s{DS}, s50")
        a(f"s_sub_u32 s64, s50, {b_x}")
        a(f"s_mov_b32 s62, {magic(14)}")
        a("s_mul_hi_u32 s65, s64, s62")
        a("s_mul_i32 s66, s65, 14")
        a("s_sub_u32 s66, s64, s66")
        srd(a, 12, AX, 0, XBYTES)
        a("s_mul_i32 s71, s65, 16*896"); a("s_lshl_b32 s66, s66, 6"); a("s_add_u32 s71, s71, s66")
        a("v_mul_u32_u24 v10, 896, v3")
        a("v_lshl_add_u32 v10, v4, 4, v10")
        a(f"buffer_load_dwordx4 v[{R}:{R+3}], v10, s[12:15], s71 offen")
        a(f"s_branch {nxt}")
        a.label(t_3)
        a(f"s_sub_u32 s64, s50, {b_3}")
        a(f"s_mov_b32 s62, {magic(112)}")
        a("s_mul_hi_u32 s66, s64, s62")
        a("s_mul_i32 s65, s66, 112")
        a("s_sub_u32 s65, s64, s65")
        a(f"s_mul_i32 s{DS}, s65, 14"); a(f"s_add_u32 s{DS}, s{DS}, s66"); a(f"s_add_u32 s{DS}, s{DS}, {b_3}")
        srd(a, 12, 44, 0, 448 * 1792 * 2)
        a("s_mov_b32 s70, 3584")
        a("s_mul_i32 s71, s66, 32*3584")
        a("s_lshr_b32 s67, s65, 1"); a("s_lshl_b32 s67, s67, 5")
        a("s_and_b32 s68, s65, 1"); a("s_lshl_b32 s68, s68, 2")
        a("s_add_u32 s67, s67, s68")
        a("v_add_u32 v10, s67, v8")
        a("v_lshlrev_b32 v10, 1, v10")
        a("v_mul_u32_u24 v11, 8*3584, v4")
        a("v_add_u32 v10, v10, v11")
        a.label(std)
        for j in range(8):
            a(f"buffer_load_ushort v{R + j}, v10, s[12:15], s71 offen")
            if j < 7: a("s_add_u32 s71, s71, s70")
        a(f"s_branch {nxt}")
        a.label(perm)
        a(f"v_cndmask_b32 v11, v10, v15, s[{M_G3}:{M_G3+1}]")
        a("s_mul_i32 s72, s70, 13")
        for j in range(8):
            vv = 10 if j < 4 else 11
            a(f"buffer_load_ushort v{R + j}, v{vv}, s[12:15], s71 offen")
            if j == 3: a("s_add_u32 s71, s71, s72")
            elif j < 7: a("s_add_u32 s71, s71, s70")
        a.label(nxt)
    a("s_waitcnt vmcnt(0)")
    for it in range(nit):
        R = 32 + it * 8; DS = 76 + it
        a(f"s_mov_b32 s50, s{32+it}")
        nx = a.newlabel("k0sx"); st = a.newlabel("k0st")
        a(f"s_cmp_ge_u32 s50, {NFRAG}"); a(f"s_cbranch_scc1 {nx}")
        a(f"s_cmp_ge_u32 s50, {b_x}"); a(f"s_cbranch_scc1 {st}")
        for i in range(4):
            a(f"v_lshl_or_b32 v{R+i}, v{R+2*i+1}, 16, v{R+2*i}")
        a.label(st)
        a(f"s_lshl_b32 s71, s{DS}, 10")
        a(f"buffer_store_dwordx4 v[{R}:{R+3}], v2, s[8:11], s71 offen{SC}")
        a.label(nx)


TOK = 100
def pb_poll(a, bits, keep=False):
    lp = a.newlabel("pblp"); dn = a.newlabel("pbdn")
    srd(a, 28, WS, PBAR, 2048)
    a("v_lshlrev_b32 v6, 5, v1")
    a("s_mov_b32 s50, 0")
    a(f"s_or_b32 s48, s{TOK+1}, {bits}")
    a(f"s_mov_b32 s49, {0xffffff00 | bits:#x}")
    a.label(lp)
    a(f"buffer_load_dwordx4 v[16:19], v6, s[28:31], 0 offen{SC}")
    a(f"buffer_load_dwordx4 v[20:23], v6, s[28:31], 0 offen offset:16{SC}")
    a("s_waitcnt vmcnt(0)")
    a(f"v_cmp_eq_u32 vcc, s{TOK}, v16")
    for k in range(1, 4):
        a(f"v_cmp_eq_u32 s[62:63], s{TOK}, v{16+2*k}"); a("s_and_b64 vcc, vcc, s[62:63]")
    for k in range(4):
        a(f"v_and_b32 v8, s49, v{17+2*k}")
        a(f"v_cmp_eq_u32 s[62:63], s48, v8"); a("s_and_b64 vcc, vcc, s[62:63]")
    a("s_cmp_eq_u64 vcc, -1"); a(f"s_cbranch_scc1 {dn}")
    a("s_sleep 1")
    a("s_add_u32 s50, s50, 1")
    a(f"s_cmp_lt_u32 s50, {SPIN_MAX}"); a(f"s_cbranch_scc1 {lp}")
    a.label(dn)
    if keep:
        for k in range(4): a(f"v_and_b32 v{10+k}, 15, v{17+2*k}")

def pb_store(a, bits):
    srd(a, 28, WS, PBAR, 2048)
    a("s_getreg_b32 s51, hwreg(HW_REG_XCC_ID, 0, 4)")
    a("s_and_b32 s51, s51, 7"); a("s_add_u32 s44, s51, 1")
    a(f"s_or_b32 s45, s44, s{TOK+1}"); a(f"s_or_b32 s45, s45, {bits}")
    a(f"v_mov_b32 v6, s{TOK}"); a("v_mov_b32 v7, s45"); a("s_lshl_b32 s45, s2, 3"); a("v_mov_b32 v8, s45")
    a("s_mov_b64 exec, 1")
    a(f"buffer_store_dwordx2 v[6:7], v8, s[28:31], 0 offen{SC}")
    a("s_mov_b64 exec, -1")

def prep(a):
    nt = a.newlabel("ntok")
    a("s_or_b32 s44, s2, s3"); a("s_cmp_lg_u32 s44, 0"); a(f"s_cbranch_scc1 {nt}")
    a("s_memrealtime s[44:45]")
    a("s_waitcnt lgkmcnt(0)")
    a("s_or_b32 s44, s44, 1"); a("s_lshl_b32 s45, s45, 8"); a("s_xor_b32 s45, s45, 0x5a3c9600")
    srd(a, 28, DBG, 0, 256)
    a("v_mov_b32 v6, s44"); a("v_mov_b32 v7, s45"); a("v_mov_b32 v8, 0")
    a("s_mov_b64 exec, 1")
    a(f"buffer_store_dwordx2 v[6:7], v8, s[28:31], 0 offen{SC}")
    a("s_mov_b64 exec, -1")
    a.label(nt)
    srd(a, 8, WS, KVACC[0], ZERO_BYTES)
    a("s_lshl_b32 s50, s2, 9")
    a("v_add_u32 v6, s50, v0")
    a("v_lshlrev_b32 v6, 2, v6")
    a("v_mov_b32 v7, 0")
    a(f"buffer_store_dword v7, v6, s[8:11], 0 offen{SC}")
    a("s_lshl_b32 s49, s2, 3"); a("s_add_u32 s49, s49, s3")
    prep_part(a, 0, 4, 2048)
    sk = a.newlabel("pbsk"); lp = a.newlabel("tklp"); dn = a.newlabel("tkdn")
    a("s_waitcnt vmcnt(0)")
    a("s_barrier")
    stamp(a, "prep stored"); gstamp(a, 1)
    a("s_cmp_lg_u32 s3, 0"); a(f"s_cbranch_scc1 {sk}")
    srd(a, 28, DBG, 0, 256)
    a("v_mov_b32 v6, 0"); a("s_mov_b32 s50, 0")
    a.label(lp)
    a(f"buffer_load_dwordx2 v[8:9], v6, s[28:31], 0 offen{SC}")
    a("s_waitcnt vmcnt(0)")
    a(f"v_readfirstlane_b32 s{TOK}, v8"); a(f"v_readfirstlane_b32 s{TOK+1}, v9")
    a(f"s_cmp_lg_u32 s{TOK}, 0"); a(f"s_cbranch_scc1 {dn}")
    a("s_sleep 1")
    a("s_add_u32 s50, s50, 1")
    a(f"s_cmp_lt_u32 s50, {SPIN_MAX}"); a(f"s_cbranch_scc1 {lp}")
    a.label(dn)
    pb_store(a, 0)
    pb_poll(a, 0, keep=True)
    a("s_lshr_b32 s45, s2, 2"); a("s_and_b32 s46, s2, 3")
    a("s_bfm_b64 s[62:63], s45, 0")
    a("s_mov_b32 s47, 0")
    for b in range(4):
        a(f"v_cmp_eq_u32 vcc, s44, v{10+b}")
        a("s_bcnt1_i32_b64 s64, vcc")
        a("s_and_b64 vcc, vcc, s[62:63]")
        a("s_bcnt1_i32_b64 s65, vcc")
        a(f"s_cmp_gt_u32 s46, {b}"); a("s_cselect_b32 s64, s64, 0")
        a(f"s_cmp_eq_u32 s46, {b}"); a("s_cselect_b32 s65, s65, 0")
        a("s_add_u32 s47, s47, s64"); a("s_add_u32 s47, s47, s65")
    a(f"s_mov_b32 s{MODE}, {1 if FORCE_FALLBACK else 0}")
    for c in range(1, 9):
        a("s_mov_b32 s66, 0")
        for b in range(4):
            a(f"v_cmp_eq_u32 vcc, {c}, v{10+b}")
            a("s_bcnt1_i32_b64 s64, vcc")
            a("s_add_u32 s66, s66, s64")
        a("s_cmp_lg_u32 s66, 32"); a(f"s_cselect_b32 s{MODE}, 1, s{MODE}")
    a("s_lshl_b32 s47, s47, 3"); a("s_add_u32 s47, s47, s51")
    a(f"s_cmp_lg_u32 s{MODE}, 0"); a("s_cselect_b32 s47, s2, s47")
    a("v_mov_b32 v8, s47"); a(f"v_mov_b32 v9, s{MODE}"); a("v_mov_b32 v6, 163832")
    a("ds_write_b64 v6, v[8:9]")
    a("s_waitcnt lgkmcnt(0)")
    a.label(sk)
    a("s_barrier")
    a("v_mov_b32 v6, 163832")
    a("ds_read_b64 v[8:9], v6")
    a("s_waitcnt lgkmcnt(0)")
    a(f"v_readfirstlane_b32 s{VWG}, v8")
    a(f"v_readfirstlane_b32 s{MODE}, v9")

def prep_flag(a, bits):
    sk = a.newlabel("pfsk")
    a("s_waitcnt vmcnt(0)")
    a("s_barrier")
    a("s_cmp_lg_u32 s3, 0"); a(f"s_cbranch_scc1 {sk}")
    pb_store(a, bits)
    a.label(sk)

def wait_prep2(a, bit):
    sk = a.newlabel("p2sk")
    a("s_cmp_lg_u32 s3, 0"); a(f"s_cbranch_scc1 {sk}")
    pb_poll(a, bit)
    a.label(sk)
    a("s_barrier")

def load_frags(a, dst, n, srdA, soff, vaddr="v2"):
    for k in range(n):
        if k and k % 4 == 0: a(f"s_add_u32 s{soff}, s{soff}, 4096")
        a(f"buffer_load_dwordx4 v[{dst+4*k}:{dst+4*k+3}], {vaddr}, s[{srdA}:{srdA+3}], s{soff} offen offset:{(k%4)*1024}{SCA}")

def k1(a, layer):
    fl = layer * F_LAYER
    if layer == 1:
        a(f"s_lshl_b32 s40, s{RB16}, 4"); a(f"s_add_u32 s40, s40, {F_XB}")
        wait_flags(a, 40, ('rows', 2))
    stamp(a, f"k1.{layer} start")
    srd(a, 8, WS, XF0 if layer == 0 else XB0, XBYTES)
    XAr = 16
    a(f"s_lshl_b32 s47, s{RB16}, 3"); a("s_add_u32 s47, s47, s3")
    a("s_mul_i32 s44, s47, 14336")
    load_frags(a, XAr, 14, 8, 44)
    a("s_waitcnt vmcnt(0)")
    stamp(a, "loaded")
    ln_stats(a, XAr, 56, 8, 9, 10, 11)
    ln_finish(a, XAr, 56, 8, 9, 72)
    a("s_barrier")
    stamp(a, "ln")
    WB = [80, 104]; ACC = 128
    def mloop(mts):
        n = len(mts)
        def rd(ks, s):
            for i, mt in enumerate(mts):
                ad, o = lds_frag(mt * 14 + ks)
                a(f"ds_read_b128 v[{WB[s]+4*i}:{WB[s]+4*i+3}], {ad} offset:{o}")
        rd(0, 0)
        for ks in range(14):
            s = ks & 1
            if ks < 13:
                rd(ks + 1, 1 - s); a(f"s_waitcnt lgkmcnt({n})")
            else:
                a("s_waitcnt lgkmcnt(0)")
            xf = f"v[{XAr+4*ks}:{XAr+4*ks+3}]"
            for i, mt in enumerate(mts):
                wf = f"v[{WB[s]+4*i}:{WB[s]+4*i+3}]"
                acc = f"v[{ACC+4*mt}:{ACC+4*mt+3}]"
                c = "0" if ks == 0 else acc
                if mt < 4: a(f"v_mfma_f32_16x16x32_bf16 {acc}, {wf}, {xf}, {c}")
                else: a(f"v_mfma_f32_16x16x32_bf16 {acc}, {xf}, {wf}, {c}")
    mloop([2, 3, 4, 5])
    PH = 80
    def rd_phi():
        for u in range(2):
            ad, o = lds_frag(84 + u)
            a(f"ds_read_b128 v[{PH+4*u}:{PH+4*u+3}], {ad} offset:{o}")
    rd_phi()
    QF, KF = 88, 92
    for i in range(4):
        a(f"v_cvt_pk_bf16_f32 v{KF+i}, v{ACC+8+2*i}, v{ACC+8+2*i+1}")
    a("s_waitcnt lgkmcnt(0)")
    stamp(a, "mfma")
    PQ, PK = 96, 104
    for u in range(2):
        a(f"v_mfma_f32_16x16x32_bf16 v[{PK+4*u}:{PK+4*u+3}], v[{KF}:{KF+3}], v[{PH+4*u}:{PH+4*u+3}], 0")
    VV = ACC + 16
    for r in range(4):
        a(f"v_cndmask_b32 v{VV+4+r}, v{VV+4+r}, 1.0, s[{M_M12}:{M_M12+1}]")
    VB = 112
    for t in range(2):
        a(f"v_cvt_pk_bf16_f32 v{VB+2*t}, v{VV+4*t}, v{VV+4*t+1}")
        a(f"v_cvt_pk_bf16_f32 v{VB+2*t+1}, v{VV+4*t+2}, v{VV+4*t+3}")
    def rnd(base):
        for i in range(0, 8, 2):
            a(f"v_cvt_pk_bf16_f32 v{base+i+1}, v{base+i}, v{base+i+1}")
            a(f"v_lshlrev_b32 v{base+i}, 16, v{base+i+1}")
            a(f"v_and_b32 v{base+i+1}, 0xffff0000, v{base+i+1}")
    rnd(PK)
    G3 = f"s[{M_G3}:{M_G3+1}]"; MG = f"s[{M_M12GE}:{M_M12GE+1}]"
    KX, KN = 184, 188
    for r in range(4):
        a(f"v_max_f32 v{KX+r}, v{PK+r}, v{PK+4+r}")
        a(f"v_min_f32 v{KN+r}, v{PK+r}, v{PK+4+r}")
    for r in range(4):
        a(f"v_cndmask_b32 v{KX+r}, v{KX+r}, v{PK+r}, {MG}")
        a(f"v_cndmask_b32 v{KN+r}, v{KN+r}, v{PK+r}, {MG}")
    for rot in (8, 4, 2, 1):
        for r in range(4):
            a(f"v_max_f32_dpp v{KX+r}, v{KX+r}, v{KX+r} row_ror:{rot} row_mask:0xf bank_mask:0xf")
            a(f"v_min_f32_dpp v{KN+r}, v{KN+r}, v{KN+r} row_ror:{rot} row_mask:0xf bank_mask:0xf")
    for r in range(4):
        a(f"v_mul_f32 v{KX+r}, s{L2E}, v{KX+r}")
        a(f"v_mul_f32 v{KN+r}, s{L2E}, v{KN+r}")
    KP, KM = 192, 200
    for i in range(8):
        a(f"v_fma_f32 v{KP+i}, v{PK+i}, s{L2E}, -v{KX+(i&3)}")
        a(f"v_fma_f32 v{KM+i}, -v{PK+i}, s{L2E}, v{KN+(i&3)}")
    for i in range(8):
        a(f"v_exp_f32 v{KP+i}, v{KP+i}")
        a(f"v_exp_f32 v{KM+i}, v{KM+i}")
    for i in range(4, 8):
        a(f"v_cndmask_b32 v{KP+i}, v{KP+i}, 0, {MG}")
        a(f"v_cndmask_b32 v{KM+i}, v{KM+i}, 0, {MG}")
    for r in range(4):
        a(f"v_add_f32 v{KX+r}, v{KP+r}, v{KP+4+r}")
        a(f"v_add_f32 v{KN+r}, v{KM+r}, v{KM+4+r}")
    allred_row16(a, "v_add_f32", [KX + r for r in range(4)] + [KN + r for r in range(4)])
    for r in range(4):
        a(f"v_rcp_f32 v{KX+r}, v{KX+r}"); a(f"v_rcp_f32 v{KN+r}, v{KN+r}")
    for i in range(8):
        a(f"v_mul_f32 v{KP+i}, v{KP+i}, v{KX+(i&3)}")
        a(f"v_mul_f32 v{KM+i}, v{KM+i}, v{KN+(i&3)}")
    KA_ = 208
    for part, E in enumerate((KP, KM)):
        for u in range(2):
            d = KA_ + (part * 2 + u) * 2
            a(f"v_cvt_pk_bf16_f32 v{d}, v{E+4*u}, v{E+4*u+1}")
            a(f"v_cvt_pk_bf16_f32 v{d+1}, v{E+4*u+2}, v{E+4*u+3}")
    KV = 216
    for part in range(2):
        for t in range(2):
            for u in range(2):
                d = KV + (part * 2 + t) * 8 + u * 4
                af = KA_ + (part * 2 + u) * 2
                a(f"v_mfma_f32_16x16x16_bf16 v[{d}:{d+3}], v[{af}:{af+1}], v[{VB+2*t}:{VB+2*t+1}], 0")
    LRED = 88064
    a("v_lshlrev_b32 v6, 2, v1")
    a("s_lshl_b32 s44, s3, 13"); a(f"s_add_u32 s44, s44, {LRED}")
    a("v_add_u32 v7, s44, v6")
    for i in range(32):
        a(f"ds_write_b32 v7, v{KV+i} offset:{i*256}")
    a("s_waitcnt lgkmcnt(0)")
    a("s_barrier")
    a("s_lshl_b32 s44, s3, 10"); a(f"s_add_u32 s44, s44, {LRED}")
    a("v_add_u32 v7, s44, v6")
    RR = 216
    for i in range(4):
        for ww in range(8):
            a(f"ds_read_b32 v{RR+i*8+ww}, v7 offset:{ww*8192+i*256}")
    a("s_waitcnt lgkmcnt(0)")
    for i in range(4):
        b = RR + i * 8
        a(f"v_add_f32 v{b}, v{b}, v{b+1}"); a(f"v_add_f32 v{b+2}, v{b+2}, v{b+3}")
        a(f"v_add_f32 v{b+4}, v{b+4}, v{b+5}"); a(f"v_add_f32 v{b+6}, v{b+6}, v{b+7}")
        a(f"v_add_f32 v{b}, v{b}, v{b+2}"); a(f"v_add_f32 v{b+4}, v{b+4}, v{b+6}")
        a(f"v_add_f32 v{b}, v{b}, v{b+4}")
    srd(a, 20, WS, KVACC[layer], 131072)
    a(f"s_lshl_b32 s44, s{C16}, 13"); a("s_lshl_b32 s45, s3, 10"); a("s_add_u32 s44, s44, s45")
    for i in range(4):
        a(f"buffer_atomic_add_f32 v{RR+i*8}, v6, s[20:23], s44 offen offset:{i*256}{SC}")
    a(f"s_add_u32 s40, s2, {fl+F_KV}")
    signal(a, 40, local=False)
    stamp(a, "kv signalled")
    mloop([0, 1])
    rd_phi()
    for i in range(4):
        a(f"v_cvt_pk_bf16_f32 v{QF+i}, v{ACC+2*i}, v{ACC+2*i+1}")
    a("s_waitcnt lgkmcnt(0)")
    for u in range(2):
        a(f"v_mfma_f32_16x16x32_bf16 v[{PQ+4*u}:{PQ+4*u+3}], v[{PH+4*u}:{PH+4*u+3}], v[{QF}:{QF+3}], 0")
    rnd(PQ)
    a("s_barrier")
    sk = a.newlabel("k1pre")
    a(f"s_cmp_ge_u32 s{VWG}, 224"); a(f"s_cbranch_scc1 {sk}")
    pre_w56(a, WPO, 0)
    a.label(sk)
    MX, MN, T0, T1 = 8, 9, 10, 11
    a(f"v_max3_f32 v{MX}, v{PQ}, v{PQ+1}, v{PQ+2}"); a(f"v_max_f32 v{MX}, v{MX}, v{PQ+3}")
    a(f"v_min3_f32 v{MN}, v{PQ}, v{PQ+1}, v{PQ+2}"); a(f"v_min_f32 v{MN}, v{MN}, v{PQ+3}")
    a(f"v_max3_f32 v{T0}, v{PQ+4}, v{PQ+5}, v{PQ+6}"); a(f"v_max3_f32 v{T0}, v{T0}, v{PQ+7}, v{MX}")
    a(f"v_min3_f32 v{T1}, v{PQ+4}, v{PQ+5}, v{PQ+6}"); a(f"v_min3_f32 v{T1}, v{T1}, v{PQ+7}, v{MN}")
    a(f"v_cndmask_b32 v{MX}, v{T0}, v{MX}, {G3}")
    a(f"v_cndmask_b32 v{MN}, v{T1}, v{MN}, {G3}")
    allred_groups(a, "v_max_f32", MX, T0)
    allred_groups(a, "v_min_f32", MN, T1)
    a(f"v_mul_f32 v{MX}, s{L2E}, v{MX}")
    a(f"v_mul_f32 v{MN}, s{L2E}, v{MN}")
    EP, EM = 16, 24
    for i in range(8):
        a(f"v_fma_f32 v{EP+i}, v{PQ+i}, s{L2E}, -v{MX}")
        a(f"v_fma_f32 v{EM+i}, -v{PQ+i}, s{L2E}, v{MN}")
    for i in range(8):
        a(f"v_exp_f32 v{EP+i}, v{EP+i}")
        a(f"v_exp_f32 v{EM+i}, v{EM+i}")
    for i in range(4, 8):
        a(f"v_cndmask_b32 v{EP+i}, v{EP+i}, 0, {G3}")
        a(f"v_cndmask_b32 v{EM+i}, v{EM+i}, 0, {G3}")
    for E, Sg in ((EP, MX), (EM, MN)):
        a(f"v_add_f32 v{Sg}, v{E}, v{E+1}")
        for i in range(2, 8): a(f"v_add_f32 v{Sg}, v{Sg}, v{E+i}")
    allred_groups(a, "v_add_f32", MX, T0)
    allred_groups(a, "v_add_f32", MN, T1)
    a(f"v_rcp_f32 v{MX}, v{MX}"); a(f"v_rcp_f32 v{MN}, v{MN}")
    for i in range(8):
        a(f"v_mul_f32 v{EP+i}, v{EP+i}, v{MX}")
        a(f"v_mul_f32 v{EM+i}, v{EM+i}, v{MN}")
    OQ = 176
    for i in range(4):
        a(f"v_cvt_pk_bf16_f32 v{OQ+i}, v{EP+2*i}, v{EP+2*i+1}")
        a(f"v_cvt_pk_bf16_f32 v{OQ+4+i}, v{EM+2*i}, v{EM+2*i+1}")
    a(f"s_mov_b32 s40, {fl+F_KV}")
    wait_flags(a, 40, ('x4',))
    stamp(a, "kv arrived")

    KL = 16
    a("v_lshlrev_b32 v6, 2, v1")
    a("v_lshlrev_b32 v7, 6, v4"); a("v_add_u32 v7, 48, v7")
    a(f"s_lshl_b32 s44, s{C16}, 13"); a("s_add_u32 s45, s44, 4096")
    for fi in range(4):
        for j in range(8):
            o = fi * 2048 + j * 256
            a(f"buffer_load_dword v{KL+fi*8+j}, v6, s[20:23], s{44 + o//4096} offen offset:{o%4096}{SC}")
    for part in range(2):
        for j in range(8):
            o = (part * 2 + 1) * 2048 + j * 256
            a(f"buffer_load_dword v{KL+32+part*8+j}, v7, s[20:23], s{44 + o//4096} offen offset:{o%4096}{SC}")
    a("s_waitcnt vmcnt(0)")
    KC = 64
    for fi in range(6):
        for i in range(4):
            a(f"v_cvt_pk_bf16_f32 v{KC+fi*4+i}, v{KL+fi*8+2*i}, v{KL+fi*8+2*i+1}")
    NUM, DEN, OF = 96, 104, 108
    for part in range(2):
        pf = f"v[{OQ+4*part}:{OQ+4*part+3}]"
        for t in range(2):
            kf = KC + (part * 2 + t) * 4
            c = "0" if part == 0 else f"v[{NUM+4*t}:{NUM+4*t+3}]"
            a(f"v_mfma_f32_16x16x32_bf16 v[{NUM+4*t}:{NUM+4*t+3}], v[{kf}:{kf+3}], {pf}, {c}")
        c = "0" if part == 0 else f"v[{DEN}:{DEN+3}]"
        a(f"v_mfma_f32_16x16x32_bf16 v[{DEN}:{DEN+3}], v[{KC+16+4*part}:{KC+16+4*part+3}], {pf}, {c}")
    bf16_round(a, DEN)
    a(f"v_add_f32 v{DEN}, {f2u(1e-6):#x}, v{DEN}")
    bf16_round(a, DEN)
    a(f"v_rcp_f32 v{DEN}, v{DEN}")
    round8(a, NUM)
    for k in range(8): a(f"v_mul_f32 v{NUM+k}, v{NUM+k}, v{DEN}")
    pack8(a, NUM, OF)
    srd(a, 16, WS, OB[layer], XBYTES)
    a(f"s_mul_i32 s44, s{C16}, 28")
    a("v_lshl_add_u32 v8, v4, 2, s44")
    for t, vo in ((0, 6), (1, 7)):
        if t: a("v_add_u32 v8, 16, v8")
        a(f"v_lshrrev_b32 v9, 5, v8"); a(f"v_lshlrev_b32 v{vo}, 10, v9")
        a("v_bfe_u32 v9, v8, 3, 2"); a(f"v_lshl_add_u32 v{vo}, v9, 8, v{vo}")
        a(f"v_lshl_add_u32 v{vo}, v3, 4, v{vo}")
        a("v_and_b32 v9, 7, v8"); a(f"v_lshl_add_u32 v{vo}, v9, 1, v{vo}")
    a("v_mov_b32 v8, 0x40000000")
    a(f"v_cndmask_b32 v7, v7, v8, {G3}")
    a("s_mul_i32 s44, s47, 14336")
    a(f"buffer_store_dwordx2 v[{OF}:{OF+1}], v6, s[16:19], s44 offen{SCA}")
    a(f"buffer_store_dwordx2 v[{OF+2}:{OF+3}], v7, s[16:19], s44 offen{SCA}")
    a(f"s_lshl_b32 s40, s{RB16}, 4"); a(f"s_add_u32 s40, s40, s{C16}"); a(f"s_add_u32 s40, s40, {fl+F_O}")
    signal(a, 40)
    stamp(a, "o signalled")

def half_exchange(a, ACC, RED, T):
    lo = a.newlabel("hx_lo"); j1 = a.newlabel("hx_j1")
    a(f"s_lshl_b32 s44, s{TT}, 1"); a(f"s_add_u32 s44, s44, s{KH}"); a("s_lshl_b32 s45, s44, 11")
    a("s_xor_b32 s44, s44, 1"); a("s_lshl_b32 s44, s44, 11")
    a(f"s_add_u32 s45, s45, {RED}"); a(f"s_add_u32 s44, s44, {RED}")
    a(f"v_add_u32 v6, s45, v2")
    a(f"v_add_u32 v7, s44, v2")
    a(f"s_cmp_eq_u32 s{KH}, 0"); a(f"s_cbranch_scc1 {lo}")
    a(f"ds_write_b128 v6, v[{ACC}:{ACC+3}]")
    a(f"ds_write_b128 v6, v[{ACC+4}:{ACC+7}] offset:1024")
    for i in range(8): a(f"v_mov_b32 v{T+i}, v{ACC+8+i}")
    a(f"s_branch {j1}")
    a.label(lo)
    a(f"ds_write_b128 v6, v[{ACC+8}:{ACC+11}]")
    a(f"ds_write_b128 v6, v[{ACC+12}:{ACC+15}] offset:1024")
    for i in range(8): a(f"v_mov_b32 v{T+i}, v{ACC+i}")
    a.label(j1)
    a("s_waitcnt lgkmcnt(0)")
    a("s_barrier")
    a(f"ds_read_b128 v[{ACC}:{ACC+3}], v7")
    a(f"ds_read_b128 v[{ACC+4}:{ACC+7}], v7 offset:1024")
    a("s_waitcnt lgkmcnt(0)")
    for i in range(8): a(f"v_add_f32 v{T+i}, v{T+i}, v{ACC+i}")

def tile_soff(a, sd):
    a(f"s_lshl_b32 s{sd}, s{RB7}, 2"); a(f"s_add_u32 s{sd}, s{sd}, s{TT}"); a(f"s_mul_i32 s{sd}, s{sd}, 14")
    a(f"s_lshl_b32 s45, s{CB7}, 1"); a(f"s_add_u32 s{sd}, s{sd}, s45"); a(f"s_add_u32 s{sd}, s{sd}, s{KH}")
    a(f"s_lshl_b32 s{sd}, s{sd}, 10")

def arow_soff(a, sd, nks):
    a(f"s_lshl_b32 s{sd}, s{RB7}, 2"); a(f"s_add_u32 s{sd}, s{sd}, s{TT}"); a(f"s_mul_i32 s{sd}, s{sd}, {nks}")
    a(f"s_mul_i32 s45, s{KH}, {nks//2}"); a(f"s_add_u32 s{sd}, s{sd}, s45")
    a(f"s_lshl_b32 s{sd}, s{sd}, 10")

def unpack_add(a, T, src):
    for i in range(4):
        a(f"v_lshlrev_b32 v8, 16, v{src+i}")
        a(f"v_and_b32 v9, 0xffff0000, v{src+i}")
        a(f"v_add_f32 v{T+2*i}, v{T+2*i}, v8")
        a(f"v_add_f32 v{T+2*i+1}, v{T+2*i+1}, v9")

def round8(a, T):
    for i in range(0, 8, 2):
        a(f"v_cvt_pk_bf16_f32 v{T+i+1}, v{T+i}, v{T+i+1}")
        a(f"v_lshlrev_b32 v{T+i}, 16, v{T+i+1}")
        a(f"v_and_b32 v{T+i+1}, 0xffff0000, v{T+i+1}")

def pack8(a, T, O):
    for i in range(4):
        a(f"v_cvt_pk_bf16_f32 v{O+i}, v{T+2*i}, v{T+2*i+1}")

def stat_exchange(a, s1, s2, ST, idx):
    a(f"s_lshl_b32 s44, s{KH}, 2"); a(f"s_add_u32 s44, s44, s{TT}"); a("s_lshl_b32 s45, s44, 7")
    a("s_xor_b32 s44, s44, 4"); a("s_lshl_b32 s44, s44, 7")
    a(f"s_add_u32 s45, s45, {ST}"); a(f"s_add_u32 s44, s44, {ST}")
    ST = 0
    a("v_lshl_add_u32 v6, v3, 3, s45")
    a("v_lshl_add_u32 v7, v3, 3, s44")
    a(f"ds_write_b64 v6, v[{s1}:{s2}] offset:{ST+idx*1024}")
    a("s_waitcnt lgkmcnt(0)")
    a("s_barrier")
    a(f"ds_read_b64 v[6:7], v7 offset:{ST+idx*1024}")
    a("s_waitcnt lgkmcnt(0)")
    a(f"v_add_f32 v{s1}, v{s1}, v6")
    a(f"v_add_f32 v{s2}, v{s2}, v7")

def dma_ops(a, setup, count, lds_base):
    setup(a)
    a("s_lshl_b32 s46, s46, 10")
    a(f"s_add_u32 s47, s46, {lds_base & 0xffffffff}")
    ops = []
    for i in range(count):
        ops.append(["s_mov_b32 m0, s47", f"buffer_load_dwordx4 v2, s[12:15], s46 offen{SCW} lds", "s_add_u32 s46, s46, 1024", "s_add_u32 s47, s47, 1024"])
    return ops

def ops_w56(a, WP, base):
    def setup(a):
        a(f"s_mul_i32 s44, s{CB7}, 57344")
        srd_soff(a, 12, WS, WP, 44, 57344)
        a("s_mul_i32 s46, s3, 7")
    return dma_ops(a, setup, 7, base)

def ops_k5a(a):
    def setup(a):
        a(f"s_mul_i32 s44, s{C5}, 114688")
        srd_soff(a, 12, WS, WP3, 44, 114688)
        a("s_mul_i32 s46, s3, 11"); a("s_min_u32 s46, s46, 73")
    return dma_ops(a, setup, 11, 57344)

def splitk_gemm7(a, XAr, ACC, WB, wbase, extra=()):
    extra = list(extra)
    a(f"s_mul_i32 s44, s{KH}, 7168")
    if wbase: a(f"s_add_u32 s44, s44, {wbase}")
    a(f"v_add_u32 v8, s44, v2")
    def rd(k, s):
        for nt in range(4):
            a(f"ds_read_b128 v[{WB[s]+4*nt}:{WB[s]+4*nt+3}], v8 offset:{(nt*14+k)*1024}")
    rd(0, 0)
    for k in range(7):
        s = k & 1
        if k < 6:
            rd(k + 1, 1 - s); a("s_waitcnt lgkmcnt(4)")
        else:
            a("s_waitcnt lgkmcnt(0)")
        for nt in range(4):
            c = "0" if k == 0 else f"v[{ACC+4*nt}:{ACC+4*nt+3}]"
            a(f"v_mfma_f32_16x16x32_bf16 v[{ACC+4*nt}:{ACC+4*nt+3}], v[{WB[s]+4*nt}:{WB[s]+4*nt+3}], v[{XAr+4*k}:{XAr+4*k+3}], {c}")
        take = (len(extra) + (6 - k)) // (7 - k)
        for _ in range(take):
            for op in extra.pop(0): a(op)

L_ST, L_RED = 145408, 147456

def sig_rb7(a, arr, **kw):
    a(f"s_lshl_b32 s40, s{RB7}, 3"); a(f"s_add_u32 s40, s40, s{CB7}"); a(f"s_add_u32 s40, s40, {arr}")
    signal(a, 40, **kw)

def k2b(a, layer):
    fl = layer * F_LAYER
    a(f"s_lshr_b32 s40, s{RB7}, 1"); a("s_lshl_b32 s40, s40, 4"); a(f"s_add_u32 s40, s40, {fl+F_O}")
    wait_flags(a, 40, ('n', 16))
    stamp(a, "k2b start")
    srd(a, 8, WS, OB[layer], XBYTES)
    srd(a, 16, WS, XF0 if layer == 0 else XB0, XBYTES)
    srd(a, 20, WS, XA[layer], XBYTES)
    XAr = 16
    arow_soff(a, 44, 14)
    load_frags(a, XAr, 7, 8, 44)
    XT = 60
    tile_soff(a, 41)
    a(f"buffer_load_dwordx4 v[{XT}:{XT+3}], v2, s[16:19], s41 offen{SCA}")
    a("s_waitcnt vmcnt(0)")
    a("s_barrier")
    stamp(a, "loaded")
    ACC = 64
    splitk_gemm7(a, XAr, ACC, [80, 96], 0, ops_w56(a, WP1, 57344))
    T = 16
    half_exchange(a, ACC, L_RED, T)
    round8(a, T)
    unpack_add(a, T, XT)
    pack8(a, T, 24)
    a(f"buffer_store_dwordx4 v[24:27], v2, s[20:23], s41 offen{SCA}")
    sig_rb7(a, fl + F_XA)
    stamp(a, "k2b done")

def k3(a, layer):
    fl = layer * F_LAYER
    a(f"s_lshl_b32 s40, s{RB7}, 3"); a(f"s_add_u32 s40, s40, {fl+F_XA}")
    wait_flags(a, 40, ('n', 7))
    stamp(a, "k3 start")
    srd(a, 8, WS, XA[layer], XBYTES)
    srd(a, 16, WS, XN[layer], XBYTES)
    srd(a, 20, WS, HB[layer], XBYTES)
    XAr = 16
    arow_soff(a, 44, 14)
    a("s_mov_b32 s42, s44")
    load_frags(a, XAr, 7, 8, 44)
    a("s_waitcnt vmcnt(0)")
    stamp(a, "loaded")
    ln_stats(a, XAr, 28, 8, 9, 10, 11)
    stat_exchange(a, 8, 9, L_ST, 0)
    ln_finish(a, XAr, 28, 8, 9, 72)
    a(f"s_mul_i32 s47, s{KH}, 7")
    for k in range(7):
        sk = a.newlabel("k3sk")
        a(f"s_add_u32 s44, s47, {k}"); a("s_lshr_b32 s44, s44, 1"); a(f"s_cmp_lg_u32 s44, s{CB7}"); a(f"s_cbranch_scc1 {sk}")
        a(f"s_add_u32 s44, s42, {k*1024}")
        a(f"buffer_store_dwordx4 v[{XAr+4*k}:{XAr+4*k+3}], v2, s[16:19], s44 offen{SCA}")
        a.label(sk)
    ln_stats(a, XAr, 28, 8, 9, 10, 11)
    stat_exchange(a, 8, 9, L_ST, 1)
    ln_finish(a, XAr, 28, 8, 9, 72)
    stamp(a, "ln2")
    ACC = 64
    splitk_gemm7(a, XAr, ACC, [80, 96], 57344, ops_w56(a, WP2, 0))
    T = 16
    half_exchange(a, ACC, L_RED, T)
    gelu_pairs(a, list(range(T, T + 8)), 32)
    pack8(a, T, 24)
    tile_soff(a, 41)
    bs = a.newlabel("k3bs"); bj = a.newlabel("k3bj")
    a(f"s_and_b32 s42, s{RB7}, 3")
    a(f"s_cmp_eq_u32 s42, s{TT}"); a("s_cselect_b32 s43, 1, 0")
    a("s_add_u32 s44, s42, 1"); a("s_and_b32 s44, s44, 2")
    a("s_cmp_eq_u32 s44, 0"); a("s_cselect_b32 s42, 1, 0")
    a("s_and_b32 s43, s43, s42")
    a("s_cmp_lg_u32 s43, 0"); a(f"s_cbranch_scc1 {bs}")
    a(f"buffer_store_dwordx4 v[24:27], v2, s[20:23], s41 offen")
    a(f"s_branch {bj}")
    a.label(bs)
    a(f"buffer_store_dwordx4 v[24:27], v2, s[20:23], s41 offen sc1")
    a.label(bj)
    a(f"s_lshl_b32 s40, s{RB7}, 3"); a(f"s_add_u32 s40, s40, s{CB7}"); a(f"s_add_u32 s40, s40, {fl+F_H}")
    signal(a, 40, remote_too=42)
    stamp(a, "k3 done")

def k4(a, layer):
    fl = layer * F_LAYER
    a(f"s_lshl_b32 s40, s{RB7}, 3"); a(f"s_add_u32 s40, s40, {fl+F_H-8}")
    wait_flags(a, 40, ('rb3', RB7))
    stamp(a, "k4 start")
    srd(a, 8, WS, HB[layer], XBYTES)
    srd(a, 16, WS, XN[layer], XBYTES)
    srd(a, 20, WS, X1[layer], XBYTES)
    XAr = 16
    a(f"s_lshl_b32 s44, s{RB7}, 6"); a(f"s_lshl_b32 s45, s{TT}, 4"); a("s_add_u32 s44, s44, s45")
    a("v_add_u32 v12, s44, v3")
    a("s_mov_b32 s45, 14336")
    for vo, sh in ((13, -1), (14, 1), (15, -2), (11, 2)):
        a(f"v_add_u32 v10, {sh}, v12")
        a("v_ashrrev_i32 v9, 4, v10")
        a(f"v_mul_lo_u32 v{vo}, v9, s45")
        a("v_and_b32 v10, 15, v10")
        a(f"v_lshl_add_u32 v{vo}, v10, 4, v{vo}")
        a(f"v_lshl_add_u32 v{vo}, v4, 8, v{vo}")
    GL = f"s[{M_GLT2}:{M_GLT2+1}]"
    hi = a.newlabel("k4hi"); jn = a.newlabel("k4jn")
    a(f"s_mul_i32 s44, s{KH}, 7168"); a("s_add_u32 s45, s44, 4096")
    a(f"s_cmp_eq_u32 s{KH}, 1"); a(f"s_cbranch_scc1 {hi}")
    a(f"v_cndmask_b32 v10, v14, v13, {GL}")
    for k in range(7):
        base = 13 if k < 3 else (10 if k == 3 else 14)
        a(f"buffer_load_dwordx4 v[{XAr+4*k}:{XAr+4*k+3}], v{base}, s[8:11], s{44+k//4} offen offset:{(k%4)*1024}{SCA}")
    a(f"s_branch {jn}")
    a.label(hi)
    a(f"v_cndmask_b32 v10, v11, v15, {GL}")
    for k in range(7):
        base = 15 if k < 3 else (10 if k == 3 else 11)
        a(f"buffer_load_dwordx4 v[{XAr+4*k}:{XAr+4*k+3}], v{base}, s[8:11], s{44+k//4} offen offset:{(k%4)*1024}{SCA}")
    a.label(jn)
    XT = 60
    tile_soff(a, 41)
    a(f"buffer_load_dwordx4 v[{XT}:{XT+3}], v2, s[16:19], s41 offen{SCA}")
    a("s_waitcnt vmcnt(0)")
    a("s_barrier")
    stamp(a, "loaded")
    ACC = 64
    splitk_gemm7(a, XAr, ACC, [80, 96], 0, ops_k5a(a))
    T = 16
    half_exchange(a, ACC, L_RED, T)
    round8(a, T)
    unpack_add(a, T, XT)
    pack8(a, T, 24)
    a(f"buffer_store_dwordx4 v[24:27], v2, s[20:23], s41 offen{SCA}")
    sig_rb7(a, fl + F_X1, pre=pre_k5b, npre=3)
    stamp(a, "k4 done")

def k5(a, layer):
    fl = layer * F_LAYER
    a(f"s_lshl_b32 s40, s{RB5}, 4"); a(f"s_add_u32 s40, s40, {fl+F_X1}")
    wait_flags(a, 40, ('rows', 2))
    stamp(a, "k5 start")
    srd(a, 8, WS, X1[layer], XBYTES)
    srd(a, 20, WS, H2[layer], S * F * 2)
    XAr = 16
    a(f"s_lshl_b32 s47, s{RB5}, 3"); a("s_add_u32 s47, s47, s3")
    a("s_mul_i32 s44, s47, 14336")
    load_frags(a, XAr, 14, 8, 44)
    a("s_waitcnt vmcnt(0)")
    stamp(a, "loaded")
    ln_stats(a, XAr, 56, 8, 9, 10, 11)
    ln_finish(a, XAr, 56, 8, 9, 72)
    a("s_barrier")
    stamp(a, "ln")
    a("v_add_u32 v13, 0x20000, v2")
    WB = [84, 116]; ACC = 148
    def rd(ks, s):
        for nt in range(8):
            ad, o = lds_frag(56 + nt * 14 + ks) if nt < 6 else lds_frag((nt - 6) * 14 + ks)
            a(f"ds_read_b128 v[{WB[s]+4*nt}:{WB[s]+4*nt+3}], {ad} offset:{o}")
    rd(0, 0)
    for ks in range(14):
        s = ks & 1
        if ks < 13:
            rd(ks + 1, 1 - s); a("s_waitcnt lgkmcnt(8)")
        else:
            a("s_waitcnt lgkmcnt(0)")
        for nt in range(8):
            c = "0" if ks == 0 else f"v[{ACC+4*nt}:{ACC+4*nt+3}]"
            a(f"v_mfma_f32_16x16x32_bf16 v[{ACC+4*nt}:{ACC+4*nt+3}], v[{WB[s]+4*nt}:{WB[s]+4*nt+3}], v[{XAr+4*ks}:{XAr+4*ks+3}], {c}")
    stamp(a, "mfma")
    gelu_pairs(a, list(range(ACC, ACC + 32)), 32)
    for i in range(16):
        a(f"v_cvt_pk_bf16_f32 v{16+i}, v{ACC+2*i}, v{ACC+2*i+1}")
    a("s_mul_i32 s44, s47, 56"); a(f"s_lshl_b32 s45, s{C5}, 2"); a("s_add_u32 s44, s44, s45"); a("s_lshl_b32 s44, s44, 10")
    for p in range(4):
        a(f"buffer_store_dwordx4 v[{16+4*p}:{19+4*p}], v2, s[20:23], s44 offen offset:{p*1024}{SCA}")
    a(f"s_lshl_b32 s40, s{RB5}, 4"); a(f"s_add_u32 s40, s40, s{C5}"); a(f"s_add_u32 s40, s40, {fl+F_H2}")
    signal(a, 40, pre=pre_k6, npre=16, prebar=True)
    stamp(a, "k5 done")

def k6(a, layer):
    fl = layer * F_LAYER
    a(f"s_lshr_b32 s40, s{RB7}, 1"); a("s_lshl_b32 s40, s40, 4"); a(f"s_add_u32 s40, s40, {fl+F_H2}")
    wait_flags(a, 40, ('n', 14))
    stamp(a, "k6 start")
    LRED = L_RED
    srd(a, 8, WS, H2[layer], S * F * 2)
    srd(a, 16, WS, X1[layer], XBYTES)
    srd(a, 20, WS, XA[layer], XBYTES)
    if layer == 0: srd(a, 24, WS, XB0, XBYTES)
    else: srd(a, 24, OUT, 0, XBYTES)
    k6_setup(a)
    XAr = 16
    arow_soff(a, 43, 56)
    def a_chunk(c):
        a(f"s_add_u32 s44, s43, {c*4096}")
        load_frags(a, XAr + 16 * c, 4, 8, 44)
    a_chunk(0); a_chunk(1)
    XT1, XT2 = 176, 180
    tile_soff(a, 41)
    a(f"buffer_load_dwordx4 v[{XT1}:{XT1+3}], v2, s[16:19], s41 offen{SCA}")
    a(f"buffer_load_dwordx4 v[{XT2}:{XT2+3}], v2, s[20:23], s41 offen{SCA}")
    if layer == 0: stamp(a, "k6 issued")
    ACC = 128; WB = [144, 160]
    a(f"s_lshl_b32 s44, s{KH}, 12")
    a("v_add_u32 v8, s44, v2")
    a(f"v_add_u32 v9, {2*SLOT}, v8")
    for c in range(7):
        if c + 2 <= 6: a_chunk(c + 2)
        seq = ["A0", "A1", "X"]
        for cc in range(c + 1):
            if cc + 2 <= 6: seq.append(f"A{cc+2}")
            if 1 <= cc <= 3 and cc < c: seq.append(f"W{cc+3}")
        need = max(seq.index(f"A{c}"), seq.index(f"W{c}") if c >= 4 else -1)
        allowed = sum(2 if x == "X" else 4 for x in seq[need + 1:])
        a(f"s_waitcnt vmcnt({allowed})")
        a("s_barrier")
        if 1 <= c <= 3: k6_chunk(a, c + 3)
        if layer == 0: stamp(a, f"k6 c{c} ready")
        vb = "v8" if (c & 3) < 2 else "v9"
        so = (c & 1) * SLOT
        def rd(k, s):
            for nt in range(4):
                a(f"ds_read_b128 v[{WB[s]+4*nt}:{WB[s]+4*nt+3}], {vb} offset:{so+nt*8192+k*1024}")
        rd(0, 0)
        for k in range(4):
            s_ = k & 1
            if k < 3:
                rd(k + 1, 1 - s_); a("s_waitcnt lgkmcnt(4)")
            else:
                a("s_waitcnt lgkmcnt(0)")
            kk = c * 4 + k
            for nt in range(4):
                cc = "0" if kk == 0 else f"v[{ACC+4*nt}:{ACC+4*nt+3}]"
                a(f"v_mfma_f32_16x16x32_bf16 v[{ACC+4*nt}:{ACC+4*nt+3}], v[{WB[s_]+4*nt}:{WB[s_]+4*nt+3}], v[{XAr+4*kk}:{XAr+4*kk+3}], {cc}")
    stamp(a, "mfma")
    T = 16
    half_exchange(a, ACC, LRED, T)
    round8(a, T)
    unpack_add(a, T, XT1)
    round8(a, T)
    unpack_add(a, T, XT2)
    pack8(a, T, 24)
    if layer == 0:
        a(f"buffer_store_dwordx4 v[24:27], v2, s[24:27], s41 offen{SCA}")
        sig_rb7(a, fl + F_XB, pre=pre_k1, npre=9)
    else:
        a(f"s_lshl_b32 s44, s{RB7}, 6"); a(f"s_lshl_b32 s45, s{TT}, 4"); a("s_add_u32 s44, s44, s45")
        a("v_add_u32 v12, s44, v3")
        a("v_mul_u32_u24 v12, 896, v12")
        a("v_lshl_add_u32 v12, v4, 4, v12")
        a(f"s_lshl_b32 s44, s{CB7}, 7"); a(f"s_lshl_b32 s45, s{KH}, 6"); a("s_add_u32 s44, s44, s45")
        a("buffer_store_dwordx4 v[24:27], v12, s[24:27], s44 offen")
    stamp(a, "k6 done")

def l2_prefetch(a, first_frag, nfrag, widx_s, nw):
    if NOPF: return
    lp = a.newlabel("pf"); dn = a.newlabel("pfd")
    srd(a, 12, WS, first_frag * 1024, nfrag * 1024)
    a(f"s_lshl_b32 s44, s{widx_s}, 12")
    a.label(lp)
    a(f"s_cmp_ge_u32 s44, {nfrag*1024}"); a(f"s_cbranch_scc1 {dn}")
    for rep in range(2):
        for k in range(4):
            a(f"buffer_load_dwordx4 v[{16+16*rep+4*k}:{19+16*rep+4*k}], v2, s[12:15], s44 offen offset:{k*1024}")
        a(f"s_add_u32 s44, s44, {nw*4096}")
    a("s_waitcnt vmcnt(4)")
    a(f"s_branch {lp}")
    a.label(dn)
    a("s_waitcnt vmcnt(0)")

def build():
    stamp_idx[0] = 0; STAMP_NAMES.clear()
    a = Asm()
    done = "L_done"
    a("s_cmp_ge_u32 s2, 256"); a(f"s_cbranch_scc1 {done}")
    a(f"s_load_dwordx2 s[{AX}:{AX+1}], s[0:1], 0")
    a(f"s_load_dwordx2 s[{OUT}:{OUT+1}], s[0:1], 72")
    a(f"s_load_dwordx2 s[{DBG}:{DBG+1}], s[0:1], 80")
    a(f"s_load_dwordx2 s[{WS}:{WS+1}], s[0:1], 88")
    a("v_and_b32 v1, 63, v0")
    a("v_lshrrev_b32 v2, 6, v0")
    a("v_readfirstlane_b32 s3, v2")
    a("v_lshlrev_b32 v2, 4, v1")
    a("v_and_b32 v3, 15, v1")
    a("v_lshrrev_b32 v4, 4, v1")
    a("v_add_u32 v5, 0x10000, v2")
    a(f"v_cmp_eq_u32 s[{M_G3}:{M_G3+1}], 3, v4")
    a(f"v_cmp_le_u32 s[{M_M12GE}:{M_M12GE+1}], 12, v3")
    a(f"v_cmp_eq_u32 s[{M_M12}:{M_M12+1}], 12, v3")
    a(f"v_cmp_gt_u32 s[{M_GLT2}:{M_GLT2+1}], 2, v4")
    a(f"s_mov_b32 s{ONES}, 0x3f803f80")
    a(f"s_mov_b32 s{L2E}, {f2u(LOG2E):#x}")
    a(f"s_mov_b32 s90, {f2u(0.044715):#x}")
    a(f"s_mov_b32 s91, {f2u(-2.0 * 0.7978845608028654 * LOG2E):#x}")
    a("s_waitcnt lgkmcnt(0)")
    stamp(a, "begin"); gstamp(a, 0)
    prep(a)
    stamp(a, "prep done"); gstamp(a, 2)
    a(f"s_mov_b32 s44, {magic(7)}")
    a(f"s_lshr_b32 s45, s{VWG}, 3")
    a(f"s_mul_hi_u32 s{RB7}, s45, s44")
    a(f"s_mul_i32 s{CB7}, s{RB7}, 7")
    a(f"s_sub_u32 s{CB7}, s45, s{CB7}")
    a(f"s_and_b32 s45, s{VWG}, 7"); a("s_lshl_b32 s45, s45, 2")
    a(f"s_add_u32 s{RB7}, s{RB7}, s45")
    a(f"s_and_b32 s{RB16}, s{VWG}, 7"); a(f"s_lshl_b32 s{RB16}, s{RB16}, 1")
    a(f"s_lshr_b32 s45, s{VWG}, 7"); a(f"s_add_u32 s{RB16}, s{RB16}, s45")
    a(f"s_lshr_b32 s{C16}, s{VWG}, 3"); a(f"s_and_b32 s{C16}, s{C16}, 15")
    a(f"s_and_b32 s{TT}, s3, 3"); a(f"s_lshr_b32 s{KH}, s3, 2")
    a(f"s_mov_b32 s44, {magic(14)}")
    a(f"s_lshr_b32 s45, s{VWG}, 3")
    a(f"s_mul_hi_u32 s{RB5}, s45, s44")
    a(f"s_mul_i32 s{C5}, s{RB5}, 14")
    a(f"s_sub_u32 s{C5}, s45, s{C5}")
    a(f"s_and_b32 s45, s{VWG}, 7"); a("s_lshl_b32 s45, s45, 1")
    a(f"s_add_u32 s{RB5}, s{RB5}, s45")
    pre_k1(a)
    for layer in range(2):
        k1(a, layer)
        idle = a.newlabel("idle"); idle2 = a.newlabel("idle2"); j = a.newlabel("join")
        a(f"s_cmp_ge_u32 s{VWG}, 224"); a(f"s_cbranch_scc1 {idle}")
        k2b(a, layer)
        k3(a, layer)
        k4(a, layer)
        k5(a, layer)
        k6(a, layer)
        if layer == 0:
            a(f"s_branch {j}")
            a.label(idle)
            a(f"s_sub_u32 s40, s{VWG}, 224"); a("s_lshr_b32 s40, s40, 3"); a("s_lshl_b32 s40, s40, 3"); a("s_add_u32 s40, s40, s3")
            l2_prefetch(a, WPO // 1024, (XF0 - WPO) // 1024, 40, 32)
            l2_prefetch(a, 0, 1376, 40, 32)
            pre_k1(a)
            a.label(j)
        else:
            a(f"s_branch {done}")
            a.label(idle)
            a(f"s_sub_u32 s40, s{VWG}, 224"); a("s_lshr_b32 s40, s40, 3"); a("s_lshl_b32 s40, s40, 3"); a("s_add_u32 s40, s40, s3")
            l2_prefetch(a, WPO // 1024, (XF0 - WPO) // 1024, 40, 32)
    a.label(done)
    a("s_endpgm")
    body = fix_hazards(a.lines)
    import re as _re
    for l in body:
        m = _re.search(r"buffer_\S+ .*offset:(\d+)", l)
        assert not m or int(m.group(1)) < 4096, l
    hdr = open("cdna_kernels/" + NAME + ".s.ref").read().split("; Override launch")[0]
    kname = NAME + "_kernel"
    nv = 256 if STAMP else 248
    return hdr + f"""; @launch grid=(256,1,1) block=(512,1,1) lds=163840
.amdgcn_target "amdgcn-amd-amdhsa--gfx950"
.text
.globl {kname}
.p2align 8
.type {kname},@function
{kname}:
""" + "\n".join(body) + f"""
.section .rodata,"a"
.p2align 6
.amdhsa_kernel {kname}
  .amdhsa_next_free_vgpr {nv}
  .amdhsa_next_free_sgpr 102
  .amdhsa_accum_offset {nv}
  .amdhsa_group_segment_fixed_size 0
  .amdhsa_kernarg_size 96
  .amdhsa_user_sgpr_count 2
  .amdhsa_user_sgpr_kernarg_segment_ptr 1
  .amdhsa_system_sgpr_workgroup_id_x 1
.end_amdhsa_kernel
"""

if __name__ == "__main__":
    out = sys.argv[1]
    if "stamp" in sys.argv[2:]:
        STAMP = True
    if "nopf" in sys.argv[2:]:
        NOPF = True
    if "fallback" in sys.argv[2:]:
        FORCE_FALLBACK = True
    open(out, "w").write(build())
    if STAMP:
        open(out + ".names", "w").write("\n".join(STAMP_NAMES))
    print("ws used", WS_USED)
```
